```python
import torch

def _softmax(x, axis=-1):
    return torch.softmax(x, dim=axis)
def _gelu(x):
    return torch.nn.functional.gelu(x, approximate="tanh")
def _silu(x):
    return torch.nn.functional.silu(x)
def _sigmoid(x):
    return torch.sigmoid(x)
def _layernorm(x, axis=-1, eps=1e-5):
    m = x.mean(dim=axis, keepdim=True)
    v = x.var(dim=axis, keepdim=True, unbiased=False)
    return (x - m) / torch.sqrt(v + eps)
def _scatter_add(tgt, idx, src, axis=0):
    return tgt.clone().index_add_(axis, idx, src)
def _segment_sum(src, seg, n):
    out = torch.zeros((n,) + src.shape[1:], dtype=src.dtype)
    return out.index_add_(0, seg, src)
def _pad(x, pw):
    flat = tuple(v for pair in reversed(pw) for v in pair)
    return torch.nn.functional.pad(x, flat)

kernel_name = 'sequential_preLN__gqa_block_cached__glu_gated_swiglu__decode'

def setup_inputs():

    _w = (lambda a: (lambda t: t.to(torch.bfloat16) if t.is_floating_point() else t)(torch.as_tensor(a)))
    def _A_setup():
        B, Sq, D = 2, 1, 576
        Hq, Hkv, Sk, Dh = 32, 16, 32768, 128
        assert Hq % Hkv == 0, (Hq, Hkv)
        return {
            "x": _w((lambda *s: torch.randn(*s, dtype=torch.bfloat16) * 0.05)(B, Sq, D)),
            "k_cache": _w((lambda *s: torch.randn(*s, dtype=torch.bfloat16) * 3.2)(B, Hkv, Sk, Dh)),
            "v_cache": _w((lambda *s: torch.randn(*s, dtype=torch.bfloat16) * 1.6)(B, Hkv, Sk, Dh)),
            "wq": _w((lambda *s: torch.randn(*s, dtype=torch.bfloat16) * 3.2)(D, Hq * Dh) * (D ** -0.5)),
            "wo": _w((lambda *s: torch.randn(*s, dtype=torch.bfloat16) * 1.6)(Hq * Dh, D) * ((Hq * Dh) ** -0.5)),
        }
    _A_in = _A_setup()

    def _B_setup():
        B, S, D, F = 2, 1, 576, 4608
        return {
            "x": _w((lambda *s: torch.randn(*s, dtype=torch.bfloat16) * 0.05)(B, S, D)),
            "w1": _w((lambda *s: torch.randn(*s, dtype=torch.bfloat16) * 1.6)(D, F) * (2.0 / D) ** 0.5),
            "w3": _w((lambda *s: torch.randn(*s, dtype=torch.bfloat16) * 1.6)(D, F) * (2.0 / D) ** 0.5),
            "w2": _w((lambda *s: torch.randn(*s, dtype=torch.bfloat16) * 1.6)(F, D) * (2.0 / F) ** 0.5),
        }
    _B_in = _B_setup()

    return {
        "A_x": _A_in["x"],
        "A_k_cache": _A_in["k_cache"],
        "A_v_cache": _A_in["v_cache"],
        "A_wq": _A_in["wq"],
        "A_wo": _A_in["wo"],
        "B_x": _B_in["x"],
        "B_w1": _B_in["w1"],
        "B_w3": _B_in["w3"],
        "B_w2": _B_in["w2"],
    }

def reference(A_x, A_k_cache, A_v_cache, A_wq, A_wo, B_x, B_w1, B_w3, B_w2):
    def _A_ref(x, k_cache, v_cache, wq, wo):
        B, Sq, D = x.shape
        Hq, Dh = 32, 128
        Hkv = k_cache.shape[1]
        rep = Hq // Hkv
        q = (lambda x, *d: x.permute(*d))((x @ wq).reshape(B, Sq, Hq, Dh), 0, 2, 1, 3)
        k = (lambda x, n, axis: torch.repeat_interleave(x, n, dim=axis))(k_cache, rep, axis=1)
        v = (lambda x, n, axis: torch.repeat_interleave(x, n, dim=axis))(v_cache, rep, axis=1)
        scores = torch.einsum("bhqd,bhkd->bhqk", q, k) * (Dh ** -0.5)
        p = _softmax(scores, axis=-1)
        o = torch.einsum("bhqk,bhkd->bhqd", p, v)
        return (lambda x, *d: x.permute(*d))(o, 0, 2, 1, 3).reshape(B, Sq, Hq * Dh) @ wo

    def _B_ref(x, w1, w3, w2):
        gate = torch.einsum("bsd,df->bsf", x, w1)
        up = torch.einsum("bsd,df->bsf", x, w3)
        h = _silu(gate) * up
        out = torch.einsum("bsf,fd->bsd", h, w2)
        return out

    x = A_x
    h = x + _A_ref(_layernorm(x, axis=-1), A_k_cache, A_v_cache, A_wq, A_wo)
    h2 = h + _B_ref(_layernorm(h, axis=-1), B_w1, B_w3, B_w2)
    return h2
```

```python
import re

def regs_of(tok):
    tok = tok.strip()
    if tok.startswith("-"): tok = tok[1:]
    if tok.startswith("abs(") or tok.startswith("|"):
        tok = tok.replace("abs(", "").replace(")", "").replace("|", "")
    m = re.fullmatch(r"([vas])(\d+)", tok)
    if m: return [tok]
    m = re.fullmatch(r"([vas])\[(\d+):(\d+)\]", tok)
    if m: return [f"{m.group(1)}{i}" for i in range(int(m.group(2)), int(m.group(3)) + 1)]
    if tok == "vcc": return ["vcc"]
    if tok in ("vcc_lo", "vcc_hi"): return ["vcc"]
    if tok == "exec": return ["exec"]
    if tok == "m0": return ["m0"]
    return []

TRANS = ("v_exp_f32", "v_log_f32", "v_rcp_f32", "v_rsq_f32", "v_sqrt_f32", "v_sin_f32", "v_cos_f32")
NODEF_S = ("s_cmp", "s_waitcnt", "s_branch", "s_cbranch", "s_barrier", "s_nop", "s_sleep", "s_endpgm", "s_setprio", "s_bitcmp", "s_setpc")

class Ins:
    def __init__(self, text):
        self.text = text
        self.label = None
        t = text.split(";")[0].strip()
        if t.endswith(":"):
            self.label = t[:-1]; self.mn = None; self.defs = []; self.uses = []; self.cls = "label"; return
        if t.startswith("."):
            self.mn = None; self.cls = "dir"; self.defs = []; self.uses = []; return
        parts = t.split(None, 1)
        mn = self.mn = parts[0]
        rest = parts[1] if len(parts) > 1 else ""
        ops = [o.strip() for o in re.split(r",(?![^\[]*\])", rest)] if rest else []
        mods = ""
        if ops:
            last = ops[-1].split(None, 1)
            if len(last) > 1 and not last[0].endswith("("):
                ops[-1] = last[0]; mods = last[1]
        self.ops, self.mods = ops, mods
        R = [regs_of(o) for o in ops]
        flat = lambda xs: [r for x in xs for r in x]
        self.dpp = bool(re.search(r"quad_perm|row_|wave_", mods)) or mn.endswith("_dpp")
        self.sdwa = mn.endswith("_sdwa")
        self.srcC = []; self.srcAB = []; self.store_data = []; self.wide = False; self.lds_dma = False
        if mn.startswith("v_mfma"):
            self.cls = "mfma"; self.defs = R[0]; self.srcAB = R[1] + R[2]; self.srcC = R[3]; self.uses = self.srcAB + self.srcC
        elif mn.startswith("v_"):
            self.cls = "valu"
            if mn.startswith("v_permlane") and "swap" in mn:
                self.defs = R[0] + R[1]; self.uses = R[0] + R[1]
            elif re.match(r"v_(add|sub|subrev|addc|subb)_co", mn):
                self.defs = R[0] + R[1]; self.uses = flat(R[2:])
            else:
                self.defs = R[0]; self.uses = flat(R[1:])
                if mn.startswith(("v_fmac", "v_dot2c", "v_writelane")) or self.sdwa or (self.dpp and ("row_mask:0xf" not in mods or "bank_mask:0xf" not in mods)):
                    self.uses = self.uses + R[0]
            self.dpp_src = R[1] if self.dpp else []
        elif mn.startswith(("buffer_", "global_")):
            self.cls = "vmem"
            self.lds_dma = bool(re.search(r"\blds\b", mods)) or (len(ops) and ops[-1] == "lds") or "load_lds" in mn
            if "load" in mn and not self.lds_dma:
                self.defs = R[0]; self.uses = flat(R[1:])
            elif "atomic" in mn and "sc0" in mods:
                self.defs = R[0]; self.uses = flat(R)
            else:
                self.defs = []; self.uses = flat(R)
                if "store" in mn:
                    self.store_data = R[0] if mn.startswith("buffer_") else R[1]
                    self.wide = mn.endswith(("x3", "x4"))
            if self.lds_dma: self.uses = self.uses + ["m0"]
        elif mn.startswith("ds_"):
            self.cls = "ds"
            if mn.startswith(("ds_read", "ds_bpermute", "ds_permute", "ds_swizzle")):
                self.defs = R[0]; self.uses = flat(R[1:])
            else:
                self.defs = []; self.uses = flat(R)
        elif mn.startswith("s_"):
            self.cls = "salu"
            if mn.startswith(NODEF_S):
                self.defs = []; self.uses = flat(R)
            elif "saveexec" in mn:
                self.defs = R[0] + ["exec"]; self.uses = flat(R[1:]) + ["exec"]
            else:
                self.defs = R[0] if R else []; self.uses = flat(R[1:])
        else:
            raise ValueError("unknown instruction: " + text)
        self.trans = mn.replace("_e32", "").replace("_e64", "") in TRANS
    def states(self):
        if self.cls in ("label", "dir"): return 0
        if self.mn == "s_nop": return int(self.ops[0], 0) + 1
        return 1
    def is_branch(self): return self.mn is not None and (self.mn.startswith("s_cbranch") or self.mn == "s_branch")
    def ends_flow(self): return self.mn in ("s_branch", "s_endpgm", "s_setpc_b64")

def isv(r): return r[0] in "va" and r not in ("vcc",)
def iss(r): return (r[0] == "s") or r == "vcc"

def required(p, c):
    n = 0
    pd, cu, cd = set(p.defs), set(c.uses), set(c.defs)
    if p.cls == "valu":
        vd = {r for r in pd if isv(r)}; sd = {r for r in pd if iss(r)}
        if c.cls == "vmem" and sd & cu: n = max(n, 5)
        if c.cls == "valu":
            if c.dpp and vd & set(c.dpp_src): n = max(n, 2)
            if sd & cu: n = max(n, 4 if c.mn.startswith(("v_readlane", "v_writelane")) else 2)
            if c.mn.startswith(("v_readlane", "v_readfirstlane")) and vd & cu: n = max(n, 1)
            if c.mn.startswith("v_permlane") and vd & cu: n = max(n, 2)
            if p.trans and not c.trans and vd & cu: n = max(n, 1)
            if p.sdwa and vd & (cu | cd): n = max(n, 1)
        if c.cls == "mfma":
            if vd & cu: n = max(n, 2)
    if p.cls == "salu" and "m0" in pd and c.cls == "vmem" and c.lds_dma: n = max(n, 1)
    if p.cls == "mfma":
        passes = 8 if "32x32" in p.mn else 4
        full = {4: 8, 8: 12}[passes]; ovl = {4: 6, 8: 10}[passes]; war = {4: 3, 8: 7}[passes]
        if c.cls == "mfma":
            if pd & set(c.srcAB): n = max(n, full)
            if pd & set(c.srcC) and p.defs != c.srcC: n = max(n, ovl)
            if pd & cd and not (pd & set(c.srcC)): n = max(n, ovl)
        elif c.cls in ("valu", "vmem", "ds"):
            if pd & (cu | cd): n = max(n, full)
            if c.cls == "valu" and set(p.srcC) & cd: n = max(n, war)
    if p.cls == "vmem" and p.wide and set(p.store_data) & cd:
        n = max(n, 2 if c.cls in ("valu", "mfma") else 1)
    return n

class Asm:
    def __init__(self): self.ins = []
    def __call__(self, text):
        for line in text.split("\n"):
            line = line.strip()
            if line: self.ins.append(Ins(line))
    def label(self, name): self.ins.append(Ins(name + ":"))
    def finalize(self, maxd=12):
        ins = self.ins
        inserted = 0
        def maps():
            labels = {x.label: i for i, x in enumerate(ins) if x.label}
            jumps = {}
            for i, x in enumerate(ins):
                if x.is_branch(): jumps.setdefault(labels[x.ops[0]], []).append(i)
            return jumps
        def need(i, jumps):
            c = ins[i]; worst = 0
            stack = [(i, 0)]; seen = set()
            while stack:
                j, d = stack.pop()
                preds = []
                if j > 0 and not ins[j-1].ends_flow(): preds.append(j - 1)
                if ins[j].label: preds += jumps.get(j, [])
                for k in preds:
                    if (k, d) in seen: continue
                    seen.add((k, d))
                    p = ins[k]
                    if p.cls not in ("label", "dir"):
                        r = required(p, c)
                        if r > d: worst = max(worst, r - d)
                    nd = d + p.states()
                    if nd < maxd: stack.append((k, nd))
            return worst
        changed = True
        while changed:
            changed = False
            jumps = maps()
            i = 0
            while i < len(ins):
                if ins[i].cls not in ("label", "dir", "salu"):
                    w = need(i, jumps)
                    if w:
                        ins.insert(i, Ins(f"s_nop {w-1}")); inserted += 1; changed = True
                        jumps = maps(); i += 1
                i += 1
        self.inserted = inserted
        return "\n".join((x.text if x.cls in ("label", "dir") else "    " + x.text) for x in ins) + "\n"
```

```python
import sys, json, struct
from asmlib import Asm

NAME = "sequential_preLN__gqa_block_cached__glu_gated_swiglu__decode"
DEF = dict(D=6, DS=8, WD=8, stamps=False, round_scores=True, counts=None, spin=200000, sleep=1, prefetch_code=True,
           nffn=(60, 60), no=(64, 64, 65), npl=(66, 66, 67), xffn=(60, 60, 59), xpl=(67, 67, 67, 66, 66))

WS_EPOCH = 0x0
WS_QP = 0x1000
WS_ML = 0x30000
WS_OP = 0x40000
WS_AP = 0x80000
WS_RP = 0x90000
WS_STAMP = 0x100000
WS_SIZE = 0x200000
OOB = 0x80000000
L_R1, L_R2 = 0, 73728
L_QST = L_R2
L_XN = 147456
L_OW = 150016
L_MLW = 154112
L_XO = 156160; XO_STRIDE = 1056
L_HB = 158272
L_ACT = 162880
LDS_BYTES = 163840
ROLE_PLAIN, ROLE_O, ROLE_FFN = 0, 1, 2
LOG2E = 0x3fb8aa3b
SCALE = struct.unpack("<I", struct.pack("<f", 128 ** -0.5))[0]
INV576 = struct.unpack("<I", struct.pack("<f", 1.0 / 576))[0]
EPS = struct.unpack("<I", struct.pack("<f", 1e-5))[0]

def make_table(cfg):
    rows = []
    ffn_i = o_i = y = x = 0
    for g in range(32):
        roles = [ROLE_PLAIN] * 8
        if g % 4 == 3:
            f = [(3 * x + k) % 8 for k in range(3)]; o = []
            cf, co, cp = list(cfg["xffn"]), [], list(cfg["xpl"]); x += 1
        else:
            f = [(2 * y + k) % 8 for k in range(2)]
            o = [(2 * y + 2 + k) % 8 for k in range(3)]
            cf, co, cp = list(cfg["nffn"]), list(cfg["no"]), list(cfg["npl"]); y += 1
        for j in f: roles[j] = ROLE_FFN
        for j in o: roles[j] = ROLE_O
        start = 0
        for j in range(8):
            if roles[j] == ROLE_FFN: n = cf.pop(0); idx = ffn_i; ffn_i += 1
            elif roles[j] == ROLE_O: n = co.pop(0); idx = (o_i // 9) * 16 + o_i % 9; o_i += 1
            else: n = cp.pop(0); idx = 0
            assert n >= 8
            rows.append((start | ((n >> 2) << 10) | ((n & 3) << 16) | (roles[j] << 24), idx))
            start += n
        assert start == 512, (g, start)
    assert ffn_i == 72 and o_i == 72
    return rows

def vr(b, n=4): return f"v[{b}:{b+n-1}]" if n > 1 else f"v{b}"
def ar(b, n=4): return f"a[{b}:{b+n-1}]" if n > 1 else f"a{b}"
def sr(b, n=4): return f"s[{b}:{b+n-1}]"

sX, sK, sV, sWQ, sWO, sW1, sW3, sW2, sOUT, sWS = 4, 6, 8, 10, 12, 16, 18, 20, 22, 26
RK, RV, RWS, RWA, RWB, RX, RWQ, RDYN = 28, 32, 36, 40, 44, 48, 52, 84
sWAVE, sTAG, sT0, sT1 = 56, 57, 58, 59
sCUR, sNXT, sTMP, sNB, sNS = 60, 61, 62, 63, 64
sA, sB, sC, sD, sE = 65, 66, 67, 68, 69
sROLE, sI0, sI1, sSPIN = 70, 71, 72, 73
sM0, sM1 = 74, 75
sHI, sSCALE, sLOG2E, sFF = 76, 77, 78, 79
sGRP, sSPLIT, sPC0, sDSO = 80, 81, 82, 88
sEPO = 89
STAMP_REGS = [90, 92, 94, 96, 98, 100, 14, 24, 6, 8]
vLANE, vKOFF, vVOFF = 1, 2, 3
vMASK = 4; vBQ = 8; vDK = 16; vS = 24; vACC = 32
vM, vL, vALPHA, vMC, vMX = 36, 37, 38, 39, 40
vT = 41
vBP = 48; vTAG, vDYN, vG, vQA = 56, 57, 58, 59
vRING = 64
vU = 128

class Gen:
    def __init__(self, cfg):
        self.c = dict(DEF); self.c.update(cfg)
        self.A = Asm(); self.nlab = 0; self.nstamp = 0
    def lab(self, p): self.nlab += 1; return f"L_{p}_{self.nlab}"
    def stamp(self, i):
        if self.c["stamps"]:
            r = STAMP_REGS[i]; self.A(f"s_memrealtime s[{r}:{r+1}]")
    def srd(self, r, ptr, size, off=None):
        A = self.A
        if off is None: A(f"s_mov_b32 s{r}, s{ptr}\ns_mov_b32 s{r+1}, s{ptr+1}")
        else: A(f"s_add_u32 s{r}, s{ptr}, s{off}\ns_addc_u32 s{r+1}, s{ptr+1}, 0")
        A(f"s_mov_b32 s{r+2}, {size}\ns_mov_b32 s{r+3}, 0x20000")
    def rnd(self, d, s):
        self.A(f"v_cvt_pk_bf16_f32 v{d}, v{s}, v{s}\nv_and_b32 v{d}, s{sHI}, v{d}")
    def rnd2(self, da, db, a, b, t):
        self.A(f"v_cvt_pk_bf16_f32 v{t}, v{a}, v{b}\nv_lshlrev_b32 v{da}, 16, v{t}\nv_and_b32 v{db}, s{sHI}, v{t}")
    def allred(self, op, v, t, steps):
        A = self.A
        for s in steps:
            if s == "p16": A(f"v_mov_b32 v{t}, v{v}\nv_permlane16_swap_b32 v{v}, v{t}\n{op} v{v}, v{v}, v{t}")
            elif s == "p32": A(f"v_mov_b32 v{t}, v{v}\nv_permlane32_swap_b32 v{v}, v{t}\n{op} v{v}, v{v}, v{t}")
            else: A(f"{op}_dpp v{v}, v{v}, v{v} {s} row_mask:0xf bank_mask:0xf")
    Q1, Q2, HM, RM = "quad_perm:[1,0,3,2]", "quad_perm:[2,3,0,1]", "row_half_mirror", "row_mirror"
    def layernorm(self, vals, steps, t0):
        A = self.A; s, q, t, u = t0, t0 + 1, t0 + 2, t0 + 3
        A(f"v_add_f32 v{s}, v{vals[0]}, v{vals[1]}\nv_add_f32 v{q}, v{vals[2]}, v{vals[3]}")
        for i, v in enumerate(vals[4:]): A(f"v_add_f32 v{(s, q)[i & 1]}, v{(s, q)[i & 1]}, v{v}")
        A(f"v_add_f32 v{s}, v{s}, v{q}")
        self.allred("v_add_f32", s, t, steps)
        A(f"v_mul_f32 v{s}, {INV576:#x}, v{s}")
        for i, v in enumerate(vals):
            A(f"v_sub_f32 v{t}, v{v}, v{s}")
            if i < 2: A(f"v_mul_f32 v{(q, u)[i]}, v{t}, v{t}")
            else: A(f"v_fmac_f32 v{(q, u)[i & 1]}, v{t}, v{t}")
        A(f"v_add_f32 v{q}, v{q}, v{u}")
        self.allred("v_add_f32", q, t, steps)
        A(f"v_mul_f32 v{q}, {INV576:#x}, v{q}")
        self.rnd2(s, q, s, q, t)
        A(f"v_add_f32 v{q}, {EPS:#x}, v{q}"); self.rnd(q, q)
        A(f"v_sqrt_f32 v{q}, v{q}"); self.rnd(q, q)
        A(f"v_rcp_f32 v{q}, v{q}")
        for v in vals: A(f"v_sub_f32 v{v}, v{v}, v{s}")
        for i in range(0, len(vals) - 1, 2): self.rnd2(vals[i], vals[i+1], vals[i], vals[i+1], t)
        if len(vals) & 1: self.rnd(vals[-1], vals[-1])
        for v in vals: A(f"v_mul_f32 v{v}, v{v}, v{q}")
    def tagw(self, regs, mask):
        for r in regs: self.A(f"v_bfi_b32 v{r}, {mask}, v{vTAG}, v{r}")
    def check(self, regs, mask, t):
        A = self.A
        A(f"v_xor_b32 v{t}, v{regs[0]}, v{vTAG}\nv_xor_b32 v{t+1}, v{regs[1]}, v{vTAG}")
        for i, r in enumerate(regs[2:]): A(f"v_bitop3_b32 v{t+(i&1)}, v{t+(i&1)}, v{r}, v{vTAG} bitop3:0xf6")
        A(f"v_or_b32 v{t}, v{t}, v{t+1}\nv_and_b32 v{t}, {mask}, v{t}\nv_cmp_ne_u32 vcc, 0, v{t}")
    def retry(self, again, done):
        A = self.A
        A(f"s_cbranch_vccz {done}\ns_sub_u32 s{sSPIN}, s{sSPIN}, 1\ns_cmp_eq_u32 s{sSPIN}, 0\ns_cbranch_scc1 {done}")
        if self.c["sleep"]: A(f"s_sleep {self.c['sleep']}")
        A(f"s_branch {again}")
    def dma(self, voff, srd, soff, ldsaddr_sreg_plus, pol="nt"):
        base, imm = ldsaddr_sreg_plus
        self.A(f"s_add_u32 m0, s{base}, {imm}\nbuffer_load_dwordx4 v{voff}, {sr(srd)}, s{soff} offen {pol} lds")

    def prologue(self):
        A = self.A; c = self.c
        A(f"s_cmp_ge_u32 s2, 256\ns_cbranch_scc1 L_end")
        A("s_load_dwordx16 s[4:19], s[0:1], 0\ns_load_dwordx8 s[20:27], s[0:1], 64")
        A(f"s_getpc_b64 s[{sPC0}:{sPC0+1}]\nL_pc:")
        A(f"s_lshl_b32 s{sA}, s2, 3\ns_add_u32 s{sA}, s{sA}, L_table-L_pc")
        A(f"s_load_dwordx2 s[{sT0}:{sT1}], s[{sPC0}:{sPC0+1}], s{sA}")
        self.stamp(0)
        A(f"v_and_b32 v{vLANE}, 63, v0\nv_lshrrev_b32 v{vT}, 6, v0\nv_readfirstlane_b32 s{sWAVE}, v{vT}")
        A(f"s_mov_b32 s{sHI}, 0xffff0000\ns_mov_b32 s{sSCALE}, {SCALE:#x}\ns_mov_b32 s{sLOG2E}, {LOG2E:#x}\ns_mov_b32 s{sFF}, 0xff")
        A(f"s_mov_b32 s{sSPIN}, {c['spin']}\ns_lshr_b32 s{sGRP}, s2, 3\ns_and_b32 s{sSPLIT}, s2, 7")
        A(f"v_lshrrev_b32 v{vG}, 4, v{vLANE}\nv_lshlrev_b32 v{vVOFF}, 4, v{vLANE}")
        A(f"v_lshrrev_b32 v{vT}, 5, v{vLANE}\nv_mul_u32_u24 v{vT}, 1152, v{vT}\nv_and_b32 v{vT+1}, 31, v{vLANE}\nv_mad_u32_u24 v{vU}, v{vT+1}, 12, v{vT}")
        A(f"v_lshrrev_b32 v{vT}, 3, v{vLANE}\nv_and_b32 v{vT+1}, 7, v{vLANE}\nv_lshlrev_b32 v{vT+1}, 4, v{vT+1}\nv_lshl_add_u32 v{vU+1}, v{vT}, 13, v{vT+1}")
        A(f"v_bfe_u32 v{vT}, v{vLANE}, 2, 2\nv_lshlrev_b32 v{vT}, 8, v{vT}\nv_lshl_add_u32 v{vT}, v{vG}, 6, v{vT}\nv_and_b32 v{vT+1}, 3, v{vLANE}\nv_lshl_add_u32 v{vKOFF}, v{vT+1}, 4, v{vT}")
        A(f"s_and_b32 s{sI0}, s2, 63\ns_lshr_b32 s{sI1}, s2, 6")
        A(f"s_mul_i32 s{sB}, s{sI1}, 160\ns_cmp_eq_u32 s{sI1}, 3\ns_cselect_b32 s{sB}, 448, s{sB}")
        A(f"s_lshl_b32 s{sC}, s{sWAVE}, 3\ns_add_u32 s{sC}, s{sC}, s{sB}\ns_lshl_b32 s{sC}, s{sC}, 13\ns_lshl_b32 s{sD}, s{sI0}, 7\ns_add_u32 s{sC}, s{sC}, s{sD}")
        A(f"s_lshl_b32 s{sE}, s{sWAVE}, 10\ns_add_u32 s{sE}, s{sE}, {L_QST}")
        A(f"s_lshl_b32 s{sA}, s{sGRP}, 23")
        A("s_waitcnt lgkmcnt(0)")
        self.srd(RX, sX, 2304)
        self.srd(RWQ, sWQ, 576 * 8192)
        A(f"s_load_dword s{sEPO}, s[{sWS}:{sWS+1}], {WS_EPOCH}")
        for t in range(3): A(f"buffer_load_dwordx3 {vr(vU+4+4*t,3)}, v{vU}, {sr(RX)}, 0 offen offset:{384*t}")
        for j in range(5):
            if j == 4: A(f"s_cmp_lt_u32 s{sI1}, 2\ns_cselect_b32 s{sC}, s{sC}, {OOB:#x}")
            self.dma(vU + 1, RWQ, sC, (sE, 4096 * j))
            if j < 4: A(f"s_add_u32 s{sC}, s{sC}, {32*8192}")
        self.srd(RK, sK, 1 << 23, sA); self.srd(RV, sV, 1 << 23, sA); self.srd(RWS, sWS, WS_SIZE)
        A(f"s_and_b32 s{sCUR}, s{sT0}, 0x3ff\ns_lshl_b32 s{sCUR}, s{sCUR}, 14\ns_lshl_b32 s{sA}, s{sWAVE}, 12\ns_add_u32 s{sCUR}, s{sCUR}, s{sA}")
        A(f"s_bfe_u32 s{sNB}, s{sT0}, 0x6000a\ns_bfe_u32 s{sNS}, s{sT0}, 0x80010\ns_lshr_b32 s{sROLE}, s{sT0}, 24")
        for n in range(8): self.kload_first(n)
        if c["prefetch_code"]:
            A(f"s_lshr_b32 s{sA}, s2, 3\ns_lshl_b32 s{sA}, s{sA}, 2\ns_add_u32 s{sA}, s{sA}, s{sWAVE}\ns_lshl_b32 s{sA}, s{sA}, 10")
            A(f"s_min_u32 s{sA}, s{sA}, L_table-L_pc-1024\nv_add_u32 v{vT}, s{sA}, v{vVOFF}")
            A(f"global_load_dwordx4 {vr(vU+120)}, v{vT}, s[{sPC0}:{sPC0+1}]")
        ny = 8 + (1 if c["prefetch_code"] else 0)
        A(f"v_bfe_u32 v{vT}, v{vLANE}, 3, 1\nv_bfe_u32 v{vT+1}, v{vLANE}, 1, 1\nv_lshl_add_u32 v{vT}, v{vT}, 1, v{vT+1}")
        A(f"v_and_b32 v{vT+1}, 1, v{vLANE}\nv_cmp_eq_u32 vcc, 1, v{vT+1}\nv_mov_b32 v{vT+2}, 0xffff\nv_mov_b32 v{vT+3}, s{sHI}\nv_cndmask_b32 v{vT+2}, v{vT+2}, v{vT+3}, vcc")
        for r in range(4): A(f"v_cmp_eq_u32 vcc, {r}, v{vT}\nv_cndmask_b32 v{vMASK+r}, 0, v{vT+2}, vcc")
        A(f"s_waitcnt vmcnt({5 + ny})")
        vals = list(range(vU + 16, vU + 34))
        for t in range(3):
            for i in range(3):
                A(f"v_lshlrev_b32 v{vals[6*t+2*i]}, 16, v{vU+4+4*t+i}\nv_and_b32 v{vals[6*t+2*i+1]}, s{sHI}, v{vU+4+4*t+i}")
        self.layernorm(vals, [self.Q1, self.Q2, self.HM, self.RM, "p16"], vU + 36)
        A(f"v_add_u32 v{vU}, {L_XN}, v{vU}")
        for t in range(3):
            for i in range(3):
                A(f"v_cvt_pk_bf16_f32 v{vU+4+4*t+i}, v{vals[6*t+2*i]}, v{vals[6*t+2*i+1]}")
                A(f"ds_write_b32 v{vU}, v{vU+4+4*t+i} offset:{384*t+4*i}")
        A(f"v_and_b32 v{vT}, 1, v{vLANE}\nv_mul_u32_u24 v{vT}, 1152, v{vT}\nv_lshl_add_u32 v{vT}, v{vG}, 4, v{vT}\ns_lshl_b32 s{sB}, s{sB}, 1\ns_add_u32 s{sB}, s{sB}, {L_XN}\nv_add_u32 v{vU+2}, s{sB}, v{vT}")
        A(f"s_cmp_lt_u32 s{sI1}, 2\ns_cselect_b32 s{sB}, 256, 0\nv_add_u32 v{vU+3}, s{sB}, v{vU+2}")
        self.tr_base(vQA, 128)
        A(f"s_lshl_b32 s{sB}, s{sWAVE}, 5\ns_add_u32 s{sB}, s{sB}, {L_QST}\nv_add_u32 v{vU+1}, s{sB}, v{vQA}")
        A(f"s_waitcnt vmcnt({ny}) lgkmcnt(0)\ns_barrier")
        X = vU + 40; Wf = vU + 60; Dq = vU + 80
        for j in range(5):
            if j < 4: A(f"ds_read_b128 {vr(X+4*j)}, v{vU+2} offset:{64*j}")
            else: A(f"ds_read_b128 {vr(X+4*j)}, v{vU+3}")
            A(f"ds_read_b64_tr_b16 {vr(Wf+4*j,2)}, v{vU+1} offset:{4096*j}\nds_read_b64_tr_b16 {vr(Wf+4*j+2,2)}, v{vU+1} offset:{4096*j+512}")
        A(f"s_add_u32 s{sTAG}, s{sEPO}, 1\ns_and_b32 s{sTAG}, s{sTAG}, 0xff\nv_mov_b32 v{vTAG}, s{sTAG}")
        A(f"v_and_b32 v{vT}, 15, v{vLANE}\nv_lshlrev_b32 v{vT+1}, 14, v{vT}\nv_lshl_add_u32 v{vT+1}, v{vG}, 4, v{vT+1}\nv_cmp_gt_u32 vcc, 2, v{vT}\nv_mov_b32 v{vT+2}, {OOB:#x}\nv_cndmask_b32 v{vT+1}, v{vT+2}, v{vT+1}, vcc")
        A(f"s_lshl_b32 s{sB}, s{sI1}, 15\ns_lshl_b32 s{sC}, s{sI0}, 8\ns_add_u32 s{sB}, s{sB}, s{sC}\ns_lshl_b32 s{sC}, s{sWAVE}, 6\ns_add_u32 s{sB}, s{sB}, s{sC}\ns_add_u32 s{sB}, s{sB}, {WS_QP}")
        for j in range(5):
            A(f"s_waitcnt lgkmcnt({3*(4-j)})")
            A(f"v_mfma_f32_16x16x32_bf16 {vr(Dq)}, {vr(Wf+4*j)}, {vr(X+4*j)}, {'0' if j == 0 else vr(Dq)}")
        self.tagw(range(Dq, Dq + 4), 15)
        A(f"buffer_store_dwordx4 {vr(Dq)}, v{vT+1}, {sr(RWS)}, s{sB} offen sc1")
        self.stamp(1)
    def tr_base(self, d, stride):
        A = self.A
        A(f"v_bfe_u32 v{vT}, v{vLANE}, 2, 2\nv_lshl_add_u32 v{vT}, v{vG}, 3, v{vT}\nv_mul_u32_u24 v{vT}, {stride}, v{vT}\nv_and_b32 v{vT+1}, 3, v{vLANE}\nv_lshl_add_u32 v{d}, v{vT+1}, 3, v{vT}")
    def kload_first(self, n):
        A = self.A
        if n % 4 == 0 and n: A(f"s_add_u32 s{sTMP}, s{sCUR}, {16384*(n//4)}")
        so = sCUR if n < 4 else sTMP
        A(f"buffer_load_dwordx4 {vr(vRING+4*n)}, v{vKOFF}, {sr(RK)}, s{so} offen offset:{1024*(n%4)} nt")
    def q_issue(self, with_k=True):
        A = self.A
        if with_k:
            for n in range(8, 16): self.kload_first(n)
            A(f"v_bfe_u32 v{vT}, v{vLANE}, 3, 1\nv_lshlrev_b32 v{vT}, 16, v{vT}\nv_bfe_u32 v{vT+1}, v{vLANE}, 2, 1\nv_lshl_add_u32 v{vT}, v{vT+1}, 9, v{vT}")
            A(f"v_lshl_add_u32 v{vT}, v{vG}, 7, v{vT}\nv_and_b32 v{vT+1}, 3, v{vLANE}\nv_lshl_add_u32 v{vU}, v{vT+1}, 5, v{vT}")
            A(f"s_lshl_b32 s{sA}, s{sGRP}, 10\ns_add_u32 s{sA}, s{sA}, {WS_QP}\ns_add_u32 s{sB}, s{sA}, 32768")
        for i, so in enumerate((sA, sB)):
            A(f"buffer_load_dwordx4 {vr(vU+4+8*i)}, v{vU}, {sr(RWS)}, s{so} offen sc1\nbuffer_load_dwordx4 {vr(vU+8+8*i)}, v{vU}, {sr(RWS)}, s{so} offen offset:16 sc1")

    def dma_stream(self, items, state, between=None):
        A = self.A; WD = self.c["WD"]
        for k, (voff, srd, soff_expr, lds) in enumerate(items):
            if state[0] >= WD:
                A(f"s_waitcnt vmcnt({WD-1})"); state[0] = WD - 1
            sreg, add = soff_expr
            A(f"s_add_u32 s{sTMP}, s{sreg}, {add}")
            self.dma(voff, srd, sTMP, (sE, lds)); state[0] += 1
            if between: between(k)
    def tr_reads(self, areg, vaddr, offs):
        return [f"ds_read_b64_tr_b16 {ar(areg+2*i,2)}, v{vaddr} offset:{o}" for i, o in enumerate(offs)]
    def spread(self, lst, n):
        per = -(-len(lst) // n)
        def f(k):
            for x in lst[k*per:(k+1)*per]: self.A(x)
        return f
    def stage_o(self):
        A = self.A
        A(f"s_lshr_b32 s{sI0}, s{sT1}, 4\ns_and_b32 s{sI1}, s{sT1}, 15")
        self.srd(RWA, sWO, 4096 * 1152)
        A(f"v_lshrrev_b32 v{vT}, 3, v{vLANE}\nv_mul_u32_u24 v{vT}, 1152, v{vT}\nv_and_b32 v{vT+1}, 7, v{vLANE}\nv_lshl_add_u32 v{vU+1}, v{vT+1}, 4, v{vT}")
        A(f"s_lshl_b32 s{sC}, s{sI0}, 9\ns_lshl_b32 s{sD}, s{sWAVE}, 3\ns_add_u32 s{sC}, s{sC}, s{sD}\ns_mul_i32 s{sC}, s{sC}, 1152\ns_lshl_b32 s{sD}, s{sI1}, 7\ns_add_u32 s{sC}, s{sC}, s{sD}")
        A(f"s_lshl_b32 s{sE}, s{sWAVE}, 10")
        st = [9]
        self.dma_stream([(vU + 1, RWA, (sC, 32 * 1152 * j), L_R1 + 4096 * j) for j in range(16)], st)
        self.q_issue()
        A(f"s_lshl_b32 s{sD}, s{sWAVE}, 5\nv_add_u32 v{vU+1}, s{sD}, v{vQA}")
        A("s_waitcnt vmcnt(12)\ns_barrier")
        for x in self.tr_reads(0, vU + 1, [L_R1 + 4096 * (i // 2) + 512 * (i % 2) for i in range(32)]): A(x)
    def stage_ffn(self):
        A = self.A
        A(f"s_mov_b32 s{sI0}, s{sT1}")
        self.srd(RWA, sW1, 576 * 9216); self.srd(RWB, sW3, 576 * 9216)
        A(f"v_lshrrev_b32 v{vT}, 3, v{vLANE}\nv_mul_u32_u24 v{vT}, 9216, v{vT}\nv_and_b32 v{vT+1}, 7, v{vLANE}\nv_lshl_add_u32 v{vU+1}, v{vT+1}, 4, v{vT}")
        A(f"s_mul_i32 s{sC}, s{sWAVE}, {8*9216}\ns_lshl_b32 s{sD}, s{sI0}, 7\ns_add_u32 s{sC}, s{sC}, s{sD}")
        A(f"s_lshl_b32 s{sE}, s{sWAVE}, 10")
        A(f"s_lshl_b32 s{sD}, s{sWAVE}, 5\nv_add_u32 v{vU+2}, s{sD}, v{vQA}\nv_add_u32 v{vU+3}, {L_R2}, v{vU+2}")
        A("s_barrier")
        G = [(vU + 1, RWA, (sC, 32 * 9216 * j), L_R1 + 4096 * j) for j in range(18)]
        U = [(vU + 1, RWB, (sC, 32 * 9216 * j), L_R2 + 4096 * j) for j in range(18)]
        WD = self.c["WD"]; st = [9]
        def offs(): return [4096 * (i // 2) + 512 * (i % 2) for i in range(36)]
        def rd(areg, va, vb):
            o = offs(); out = []
            for i in range(36):
                if o[i] < 65536 - 4096: out.append(f"ds_read_b64_tr_b16 {ar(areg+2*i,2)}, v{va} offset:{o[i]}")
                else: out.append(f"ds_read_b64_tr_b16 {ar(areg+2*i,2)}, v{vb} offset:{o[i]-32768}")
            return out
        A(f"v_add_u32 v{vU+20}, 32768, v{vU+2}\nv_add_u32 v{vU+21}, 32768, v{vU+3}")
        self.dma_stream(G + U[:WD], st)
        A(f"s_waitcnt vmcnt({WD})\ns_barrier"); st[0] = min(st[0], WD)
        self.dma_stream(U[WD:], st, self.spread(rd(0, vU + 2, vU + 20), 18 - WD))
        A("s_waitcnt lgkmcnt(0)\ns_barrier")
        self.srd(RWA, sW2, 4608 * 1152)
        A(f"s_mul_i32 s{sC}, s{sI0}, {64*1152}\ns_lshl_b32 s{sD}, s{sWAVE}, 10\ns_add_u32 s{sC}, s{sC}, s{sD}")
        W2 = [(vVOFF, RWA, (sC, 4096 * j), L_R1 + 4096 * j) for j in range(18)]
        self.dma_stream(W2[:WD], st)
        A(f"s_waitcnt vmcnt({WD})\ns_barrier"); st[0] = min(st[0], WD)
        self.dma_stream(W2[WD:], st, self.spread(rd(72, vU + 3, vU + 21), 18 - WD))
        self.q_issue()
        self.tr_base(vU + 1, 1152)
        A(f"s_mul_i32 s{sD}, s{sWAVE}, 288\nv_add_u32 v{vU+1}, s{sD}, v{vU+1}")
        A("s_waitcnt vmcnt(12)\ns_barrier")
        for j in range(9):
            for s in range(2):
                for hh in range(2):
                    A(f"ds_read_b64_tr_b16 {ar(144+8*j+4*s+2*hh,2)}, v{vU+1} offset:{L_R1 + 36864*s + 4608*hh + 32*j}")
    def q_finish(self):
        A = self.A
        again, done = self.lab("qa"), self.lab("qd")
        A("s_waitcnt vmcnt(0)\ns_branch L_qchk\nL_qagain:")
        self.q_issue(with_k=False)
        A("s_waitcnt vmcnt(0)\nL_qchk:")
        R = list(range(vU + 4, vU + 20))
        self.check(R, 15, vT)
        self.retry("L_qagain", done)
        A.label(done)
        for i in range(8): A(f"v_add_f32 v{R[i]}, v{R[i]}, v{R[i+8]}")
        for i in range(8): A(f"v_add_f32_dpp v{R[i+8]}, v{R[i]}, v{R[i]} row_ror:8 row_mask:0xf bank_mask:0xf")
        for i in range(4): A(f"v_cvt_pk_bf16_f32 v{R[i]}, v{R[8+2*i]}, v{R[9+2*i]}")
        A(f"v_and_b32 v{vT}, 8, v{vLANE}\nv_cmp_eq_u32 vcc, 0, v{vT}")
        for i in range(4): A(f"v_cndmask_b32 v{vBQ+i}, 0, v{R[i]}, vcc")
        for i in range(4): A(f"v_sub_u32 v{vBQ+4+i}, v{R[i]}, v{vBQ+i}")
        for i in range(4): A(f"v_mov_b32 v{vACC+i}, 0")
        A(f"v_mov_b32 v{vM}, 0xff61b1e6\nv_mov_b32 v{vL}, 0\ns_waitcnt lgkmcnt(0)")
        self.stamp(2)

    def extract(self, t):
        d = vDK + 4 * (t & 1); s = vS + t
        o = [f"v_mov_b32_dpp v{s}, v{d} quad_perm:[0,0,0,0] row_mask:0xf bank_mask:0xf"]
        for r in range(1, 4): o.append(f"v_add_f32_dpp v{s}, v{d+r}, v{s} quad_perm:[{r},{r},{r},{r}] row_mask:0xf bank_mask:0xf")
        return o
    def roundp(self, t):
        a, b, x = vS + t, vS + t + 1, vT
        if not self.c["round_scores"]:
            return [f"v_mul_f32 v{a}, s{sSCALE}, v{a}", f"v_mul_f32 v{b}, s{sSCALE}, v{b}"]
        return [f"v_cvt_pk_bf16_f32 v{x}, v{a}, v{b}", f"v_lshlrev_b32 v{a}, 16, v{x}", f"v_and_b32 v{b}, s{sHI}, v{x}",
                f"v_mul_f32 v{a}, s{sSCALE}, v{a}", f"v_mul_f32 v{b}, s{sSCALE}, v{b}",
                f"v_cvt_pk_bf16_f32 v{x}, v{a}, v{b}", f"v_lshlrev_b32 v{a}, 16, v{x}", f"v_and_b32 v{b}, s{sHI}, v{x}"]
    def maxp(self, t):
        return [f"v_max3_f32 v{vMX}, v{vM if t == 0 else vMX}, v{vS+t}, v{vS+t+1}"]
    def pexp(self, t):
        s = vS + t
        return [f"v_fma_f32 v{s}, v{s}, s{sLOG2E}, v{vMC}", f"v_exp_f32 v{s}, v{s}", f"v_add_f32 v{vL}, v{vL}, v{s}", f"v_cvt_pk_bf16_f32 v{s}, v{s}, v{s}"]
    def bprep(self, n):
        p = vS + (n >> 1); b = vBP + 4 * (n & 1); o = []
        for r in range(4):
            if (r >> 1) == (n & 1): o.append(f"v_and_b32 v{b+r}, v{p}, v{vMASK+r}")
            else: o.append(f"v_and_b32_dpp v{b+r}, v{p}, v{vMASK+r} row_ror:8 row_mask:0xf bank_mask:0xf")
        return o
    def tile(self, NK, D, issue, first=False, part="both"):
        A = self.A; NT = NK // 2
        def emit(l):
            for x in l: A(x)
        if part in ("both", "k"):
            for n in range(NK):
                if not first: A(f"s_waitcnt vmcnt({D-1})")
                d = vDK + 4 * ((n >> 1) & 1)
                A(f"v_mfma_f32_16x16x32_bf16 {vr(d)}, {vr(vRING+4*(n%16))}, {vr(vBQ+4*(n&1))}, {'0' if n % 2 == 0 else vr(d)}")
                if not (first and n + D < NK): issue(n + D)
                if n >= 3 and n % 2 == 1: emit(self.extract((n - 3) // 2))
                if n >= 6 and n % 4 == 2: emit(self.roundp((n - 6) // 2)); emit(self.maxp((n - 6) // 2))
        if part in ("both", "v"):
            emit(self.extract(NT - 1)); emit(self.roundp(NT - 2)); emit(self.maxp(NT - 2))
            self.allred("v_max_f32", vMX, vT, ["row_ror:8", "p16", "p32"])
            A(f"v_sub_f32 v{vALPHA}, v{vM}, v{vMX}\nv_mul_f32 v{vMC}, s{sLOG2E}, v{vMX}\nv_mul_f32 v{vALPHA}, s{sLOG2E}, v{vALPHA}\nv_sub_f32 v{vMC}, 0, v{vMC}")
            A(f"v_exp_f32 v{vALPHA}, v{vALPHA}\nv_mov_b32 v{vM}, v{vMX}\nv_mul_f32 v{vL}, v{vL}, v{vALPHA}")
            emit(self.pexp(0))
            for r in range(4): A(f"v_mul_f32 v{vACC+r}, v{vACC+r}, v{vALPHA}")
            emit(self.bprep(0))
            for n in range(NK):
                A(f"s_waitcnt vmcnt({D-1})")
                A(f"v_mfma_f32_16x16x32_bf16 {vr(vACC)}, {vr(vRING+4*((NK+n)%16))}, {vr(vBP+4*(n&1))}, {vr(vACC)}")
                issue(NK + n + D)
                if n % 2 == 0 and n // 2 + 1 < NT: emit(self.pexp(n // 2 + 1))
                if n + 1 < NK: emit(self.bprep(n + 1))
    def ld(self, slot, voff, srd, so, imm):
        self.A(f"buffer_load_dwordx4 {vr(vRING+4*slot)}, v{voff}, {sr(srd)}, s{so} offen offset:{imm} nt")
    def stream(self):
        A = self.A; D, DS = self.c["D"], self.c["DS"]
        assert 4 <= D <= 8 and D <= DS <= 8
        grp = [None]
        def big_issue(m):
            if m < 32:
                j = m % 16; voff, srd = (vKOFF, RK) if m < 16 else (vVOFF, RV)
                if j >= 4 and grp[0] != j // 4:
                    A(f"s_add_u32 s{sTMP}, s{sCUR}, {16384*(j//4)}"); grp[0] = j // 4
                self.ld(m % 16, voff, srd, sCUR if j < 4 else sTMP, 1024 * (j % 4))
            else:
                j = m - 32
                if j < 4: self.ld(j, vKOFF, RK, sNXT, 1024 * j)
                else: self.ld(j, vDYN, RDYN, sDSO, 1024 * (j % 4))
        def top():
            A(f"s_add_u32 s{sNXT}, s{sCUR}, 65536\ns_add_u32 s{sDSO}, s{sCUR}, {65536+16384}")
            A(f"s_cmp_gt_u32 s{sNB}, 1\ns_cselect_b64 s[{sM0}:{sM1}], -1, 0\ns_cselect_b32 s{RDYN}, s{RK}, s{RV}\ns_cselect_b32 s{RDYN+1}, s{RK+1}, s{RV+1}\ns_cselect_b32 s{sDSO}, s{sDSO}, s{sNXT}")
            A(f"v_cndmask_b32 v{vDYN}, v{vVOFF}, v{vKOFF}, s[{sM0}:{sM1}]")
            A(f"s_add_u32 s{sA}, s{sNB}, s{sNS}\ns_cmp_gt_u32 s{sA}, 1\ns_cselect_b32 s{sNXT}, s{sNXT}, {OOB:#x}\ns_cselect_b32 s{sDSO}, s{sDSO}, {OOB:#x}")
        A(f"s_mov_b32 s{RDYN+2}, {1<<23}\ns_mov_b32 s{RDYN+3}, 0x20000")
        top()
        self.tile(16, D, big_issue, first=True, part="k")
        at_mid = grp[0]; grp[0] = None
        A("s_branch L_mid\n.p2align 6\nL_big:")
        self.tile(16, D, big_issue, part="k")
        assert at_mid == grp[0] or D <= 4
        A("L_mid:")
        self.tile(16, D, big_issue, part="v")
        A(f"s_mov_b32 s{sCUR}, s{sNXT}\ns_sub_u32 s{sNB}, s{sNB}, 1\ns_cmp_eq_u32 s{sNB}, 0\ns_cbranch_scc1 L_small_entry")
        top()
        A("s_branch L_big\nL_small_entry:")
        A(f"s_cmp_eq_u32 s{sNS}, 0\ns_cbranch_scc1 L_stream_done")
        for j in range(D, DS): self.ld(j, vVOFF, RV, sCUR, 1024 * (j % 4))
        def small_issue(m):
            so = sCUR if m < 8 else sNXT; j = m % 8
            if j < 4: self.ld(j, vKOFF, RK, so, 1024 * j)
            else: self.ld(j, vVOFF, RV, so, 1024 * (j - 4))
        A("L_small:")
        A(f"s_add_u32 s{sNXT}, s{sCUR}, 16384\ns_cmp_gt_u32 s{sNS}, 1\ns_cselect_b32 s{sNXT}, s{sNXT}, {OOB:#x}")
        self.tile_small(DS, small_issue)
        A(f"s_mov_b32 s{sCUR}, s{sNXT}\ns_sub_u32 s{sNS}, s{sNS}, 1\ns_cmp_lg_u32 s{sNS}, 0\ns_cbranch_scc1 L_small")
        A("L_stream_done:")
    def tile_small(self, D, issue):
        A = self.A
        self.tile(4, D, issue)

    def publish_partial(self):
        A = self.A
        self.stamp(3)
        self.allred("v_add_f32", vL, vT, ["row_ror:8", "p16", "p32"])
        A(f"s_lshl_b32 s{sA}, s{sWAVE}, 10\ns_add_u32 s{sA}, s{sA}, {L_OW}\nv_add_u32 v{vU}, s{sA}, v{vVOFF}")
        A(f"s_lshl_b32 s{sA}, s{sWAVE}, 9\ns_add_u32 s{sA}, s{sA}, {L_MLW}\nv_lshl_add_u32 v{vU+1}, v{vLANE}, 3, s{sA}")
        A(f"ds_write_b128 v{vU}, {vr(vACC)}\nds_write_b64 v{vU+1}, {vr(vM,2)}")
        A("s_waitcnt vmcnt(0) lgkmcnt(0)\ns_barrier")
        A(f"s_cmp_lg_u32 s{sWAVE}, 0\ns_cbranch_scc1 L_dispatch")
        O = vU + 4; ML = vU + 20; F = vU + 28; R = vU + 32; G = vU + 36
        for w in range(4): A(f"ds_read_b64 {vr(ML+2*w,2)}, v{vU+1} offset:{512*w}")
        for w in range(4): A(f"ds_read_b128 {vr(O+4*w)}, v{vU} offset:{1024*w}")
        A(f"v_bfe_u32 v{vT}, v{vLANE}, 2, 1\nv_lshlrev_b32 v{vT+1}, 9, v{vT}\nv_lshl_add_u32 v{vT+1}, v{vG}, 7, v{vT+1}\nv_bfe_u32 v{vT+2}, v{vLANE}, 3, 1\nv_lshl_add_u32 v{vT+1}, v{vT+2}, 6, v{vT+1}")
        A(f"v_and_b32 v{vT+2}, 3, v{vLANE}\nv_lshl_add_u32 v{vU+2}, v{vT+2}, 4, v{vT+1}")
        A(f"v_lshlrev_b32 v{vT}, 7, v{vT}\nv_and_b32 v{vT+1}, 0x3b, v{vLANE}\nv_cmp_eq_u32 vcc, 0, v{vT+1}\nv_mov_b32 v{vT+2}, {OOB:#x}\nv_cndmask_b32 v{vU+3}, v{vT+2}, v{vT}, vcc")
        A(f"s_lshl_b32 s{sA}, s2, 10\ns_add_u32 s{sA}, s{sA}, {WS_OP}\ns_lshl_b32 s{sB}, s{sGRP}, 8\ns_lshl_b32 s{sC}, s{sSPLIT}, 4\ns_add_u32 s{sB}, s{sB}, s{sC}\ns_add_u32 s{sB}, s{sB}, {WS_ML}")
        A("s_waitcnt lgkmcnt(4)")
        A(f"v_max3_f32 v{G}, v{ML}, v{ML+2}, v{ML+4}\nv_max_f32 v{G}, v{G}, v{ML+6}")
        for w in range(4): A(f"v_sub_f32 v{F+w}, v{ML+2*w}, v{G}")
        for w in range(4): A(f"v_mul_f32 v{F+w}, s{sLOG2E}, v{F+w}")
        for w in range(4): A(f"v_exp_f32 v{F+w}, v{F+w}")
        A(f"v_mul_f32 v{G+1}, v{F}, v{ML+1}")
        for w in range(1, 4): A(f"v_fmac_f32 v{G+1}, v{F+w}, v{ML+2*w+1}")
        A("s_waitcnt lgkmcnt(0)")
        for r in range(4): A(f"v_mul_f32 v{R+r}, v{F}, v{O+r}")
        for w in range(1, 4):
            for r in range(4): A(f"v_fmac_f32 v{R+r}, v{F+w}, v{O+4*w+r}")
        self.tagw(range(R, R + 4), f"s{sFF}")
        A(f"buffer_store_dwordx4 {vr(R)}, v{vU+2}, {sr(RWS)}, s{sA} offen sc1")
        self.tagw([G, G + 1], f"s{sFF}")
        A(f"v_mov_b32 v{G+2}, v{G}\nv_mov_b32 v{G+3}, v{G+1}")
        A(f"buffer_store_dwordx4 {vr(G)}, v{vU+3}, {sr(RWS)}, s{sB} offen sc1")
        A("L_dispatch:")
        self.stamp(4)
        A(f"s_cmp_eq_u32 s{sROLE}, {ROLE_FFN}\ns_cbranch_scc1 L_tail_ffn\ns_cmp_eq_u32 s{sROLE}, {ROLE_PLAIN}\ns_cbranch_scc1 L_finish")
    def tail_o(self):
        A = self.A
        O = vU + 8; ML = vU + 40; X = vU + 48; Dq = vU + 44
        A(f"v_lshrrev_b32 v{vT}, 5, v{vLANE}\nv_and_b32 v{vT+1}, 31, v{vLANE}\nv_lshlrev_b32 v{vT+2}, 4, v{vT+1}\nv_lshl_add_u32 v{vU}, v{vT}, 17, v{vT+2}")
        A(f"v_and_b32 v{vT+2}, 7, v{vLANE}\nv_lshlrev_b32 v{vT+3}, 4, v{vT+2}\nv_lshl_add_u32 v{vU+1}, v{vT}, 12, v{vT+3}")
        A(f"v_mul_u32_u24 v{vT}, {XO_STRIDE}, v{vT}\nv_lshrrev_b32 v{vT+1}, 3, v{vT+1}\nv_lshl_add_u32 v{vT}, v{vT+1}, 6, v{vT}\nv_lshl_add_u32 v{vT}, v{vT+2}, 1, v{vT}")
        A(f"s_lshl_b32 s{sA}, s{sWAVE}, 8\ns_add_u32 s{sA}, s{sA}, {L_XO}\nv_add_u32 v{vU+2}, s{sA}, v{vT}")
        A(f"v_and_b32 v{vT}, 1, v{vLANE}\nv_mul_u32_u24 v{vT}, {XO_STRIDE}, v{vT}\nv_lshl_add_u32 v{vT}, v{vG}, 4, v{vT}\nv_add_u32 v{vU+3}, {L_XO}, v{vT}")
        A(f"v_and_b32 v{vT}, 15, v{vLANE}\nv_mul_u32_u24 v{vT+1}, 2304, v{vT}\nv_lshl_add_u32 v{vT+1}, v{vG}, 4, v{vT+1}\nv_cmp_gt_u32 vcc, 2, v{vT}\nv_mov_b32 v{vT+2}, {OOB:#x}\nv_cndmask_b32 v{vU+4}, v{vT+2}, v{vT+1}, vcc")
        A(f"s_lshl_b32 s{sA}, s{sI0}, 1\ns_lshr_b32 s{sB}, s{sWAVE}, 1\ns_add_u32 s{sA}, s{sA}, s{sB}\ns_and_b32 s{sB}, s{sWAVE}, 1")
        A(f"s_lshl_b32 s{sC}, s{sA}, 13\ns_lshl_b32 s{sD}, s{sB}, 9\ns_add_u32 s{sC}, s{sC}, s{sD}\ns_add_u32 s{sC}, s{sC}, {WS_OP}\ns_add_u32 s{sD}, s{sC}, 4096")
        A(f"s_lshl_b32 s{sA}, s{sA}, 8\ns_lshl_b32 s{sB}, s{sB}, 7\ns_add_u32 s{sA}, s{sA}, s{sB}\ns_add_u32 s{sA}, s{sA}, {WS_ML}")
        A(f"s_mul_i32 s{sB}, s{sI0}, 4608\ns_lshl_b32 s{sE}, s{sI1}, 8\ns_add_u32 s{sB}, s{sB}, s{sE}\ns_lshl_b32 s{sE}, s{sWAVE}, 6\ns_add_u32 s{sB}, s{sB}, s{sE}\ns_add_u32 s{sB}, s{sB}, {WS_AP}")
        done = self.lab("od")
        A("L_oagain:")
        A(f"buffer_load_dwordx4 {vr(ML)}, v{vU+1}, {sr(RWS)}, s{sA} offen sc1")
        for s in range(8): A(f"buffer_load_dwordx4 {vr(O+4*s)}, v{vU}, {sr(RWS)}, s{sC if s < 4 else sD} offen offset:{1024*(s%4)} sc1")
        A("s_waitcnt vmcnt(0)")
        self.check(list(range(O, O + 36)), f"s{sFF}", vT)
        self.retry("L_oagain", done)
        A.label(done)
        self.stamp(5)
        Mx, Wt, Ls = vT + 2, vT + 3, vT + 4
        A(f"v_and_b32 v{ML}, 0xffffff00, v{ML}\nv_mov_b32 v{Mx}, v{ML}")
        self.allred("v_max_f32", Mx, vT, [self.Q1, self.Q2, self.HM])
        A(f"v_sub_f32 v{Wt}, v{ML}, v{Mx}\nv_mul_f32 v{Wt}, s{sLOG2E}, v{Wt}\nv_exp_f32 v{Wt}, v{Wt}\nv_mul_f32 v{Ls}, v{Wt}, v{ML+1}")
        self.allred("v_add_f32", Ls, vT, [self.Q1, self.Q2, self.HM])
        A(f"v_rcp_f32 v{Ls}, v{Ls}\nv_mul_f32 v{Wt}, v{Wt}, v{Ls}")
        for r in range(4): A(f"v_mul_f32_dpp v{Dq+r}, v{Wt}, v{O+r} row_newbcast:0 row_mask:0xf bank_mask:0xf")
        for s in range(1, 8):
            for r in range(4): A(f"v_fmac_f32_dpp v{Dq+r}, v{Wt}, v{O+4*s+r} row_newbcast:{s} row_mask:0xf bank_mask:0xf")
        A(f"v_cvt_pk_bf16_f32 v{Dq}, v{Dq}, v{Dq+1}\nv_cvt_pk_bf16_f32 v{Dq+2}, v{Dq+2}, v{Dq+3}")
        A(f"ds_write_b16 v{vU+2}, v{Dq}\nds_write_b16_d16_hi v{vU+2}, v{Dq} offset:16\nds_write_b16 v{vU+2}, v{Dq+2} offset:32\nds_write_b16_d16_hi v{vU+2}, v{Dq+2} offset:48")
        A("s_waitcnt lgkmcnt(0)\ns_barrier")
        for s in range(16): A(f"ds_read_b128 {vr(X+4*s)}, v{vU+3} offset:{64*s}")
        for s in range(16):
            if s == 0: A("s_waitcnt lgkmcnt(15)")
            else: A(f"s_waitcnt lgkmcnt({15-s})")
            A(f"v_mfma_f32_16x16x32_bf16 {vr(Dq)}, {ar(4*s)}, {vr(X+4*s)}, {'0' if s == 0 else vr(Dq)}")
        self.tagw(range(Dq, Dq + 4), f"s{sFF}")
        A(f"buffer_store_dwordx4 {vr(Dq)}, v{vU+4}, {sr(RWS)}, s{sB} offen sc1")
        self.stamp(6)
        A("s_branch L_finish")
    def tail_ffn(self):
        A = self.A
        A("L_tail_ffn:")
        P = vU + 16; XV = vU + 6; X = vU + 40; Dg = vU + 112; Du = vU + 116; Hh = vU + 28
        pr = lambda pg, i: P + 12 * pg + 4 * (i // 3) + i % 3
        A(f"v_and_b32 v{vT}, 1, v{vLANE}\nv_mul_u32_u24 v{vT+1}, 1152, v{vT}\nv_lshl_add_u32 v{vT+1}, v{vG}, 4, v{vT+1}\nv_add_u32 v{vU}, {L_XN}, v{vT+1}")
        A(f"v_lshlrev_b32 v{vT+1}, 7, v{vT}\nv_lshl_add_u32 v{vT+1}, v{vG}, 4, v{vT+1}\nv_add_u32 v{vU+1}, {L_ACT}, v{vT+1}")
        A(f"v_and_b32 v{vT}, 1, v{vG}\nv_lshlrev_b32 v{vT}, 7, v{vT}\nv_and_b32 v{vT+1}, 15, v{vLANE}\nv_lshl_add_u32 v{vT}, v{vT+1}, 1, v{vT}")
        A(f"s_lshl_b32 s{sA}, s{sWAVE}, 5\ns_add_u32 s{sA}, s{sA}, {L_ACT}\nv_add_u32 v{vU+2}, s{sA}, v{vT}")
        A(f"v_lshrrev_b32 v{vT}, 3, v{vLANE}\nv_mul_u32_u24 v{vT}, 4608, v{vT}\nv_and_b32 v{vT+1}, 7, v{vLANE}\nv_lshl_add_u32 v{vU+3}, v{vT+1}, 3, v{vT}")
        A(f"v_cmp_gt_u32 vcc, 16, v{vLANE}\nv_mov_b32 v{vT+2}, {OOB:#x}\nv_cndmask_b32 v{vU+4}, v{vT+2}, v{vU+3}, vcc")
        A(f"v_and_b32 v{vT}, 16, v{vLANE}\nv_cmp_ne_u32 s[{sM0}:{sM1}], 0, v{vT}")
        A(f"s_cmp_ge_u32 s{sWAVE}, 2\ns_cbranch_scc1 L_ffn_b1")
        self.srd(RX, sX, 2304)
        A(f"v_mul_u32_u24 v{vU+5}, 6, v{vLANE}\ns_mul_i32 s{sA}, s{sWAVE}, 1152")
        for t in range(3):
            for i in range(3): A(f"buffer_load_ushort v{XV+3*t+i}, v{vU+5}, {sr(RX)}, s{sA} offen offset:{384*t+2*i}")
        A(f"v_lshlrev_b32 v{vU+15}, 1, v{vU+5}\ns_mul_i32 s{sB}, s{sWAVE}, 2304\ns_add_u32 s{sB}, s{sB}, {WS_AP}")
        done = self.lab("fd")
        A("L_fagain:")
        for pg in range(8):
            A(f"s_add_u32 s{sC}, s{sB}, {4608*pg}")
            for t in range(3): A(f"buffer_load_dwordx3 {vr(pr(pg,3*t),3)}, v{vU+15}, {sr(RWS)}, s{sC} offen offset:{768*t} sc1")
        A("s_waitcnt vmcnt(0)")
        self.check([pr(pg, i) for pg in range(8) for i in range(9)], f"s{sFF}", vT)
        self.retry("L_fagain", done)
        A.label(done)
        self.stamp(5)
        for st in (4, 2, 1):
            for pg in range(st):
                for i in range(9): A(f"v_add_f32 v{pr(pg,i)}, v{pr(pg,i)}, v{pr(pg+st,i)}")
        vals = [pr(0, i) for i in range(9)]
        for i in range(0, 8, 2): self.rnd2(vals[i], vals[i+1], vals[i], vals[i+1], vT)
        self.rnd(vals[8], vals[8])
        for i in range(9): A(f"v_lshlrev_b32 v{XV+i}, 16, v{XV+i}\nv_add_f32 v{vals[i]}, v{XV+i}, v{vals[i]}")
        for i in range(0, 8, 2): self.rnd2(vals[i], vals[i+1], vals[i], vals[i+1], vT)
        self.rnd(vals[8], vals[8])
        for i in range(9): A(f"v_mov_b32 v{Hh+i}, v{vals[i]}")
        self.layernorm(vals, [self.Q1, self.Q2, self.HM, self.RM, "p16", "p32"], vT)
        A(f"s_add_u32 s{sA}, s{sA}, {L_XN}\nv_add_u32 v{vU+5}, s{sA}, v{vU+5}")
        for i in range(0, 8, 2):
            A(f"v_cvt_pk_bf16_f32 v{vals[i]}, v{vals[i]}, v{vals[i+1]}")
            A(f"ds_write_b16 v{vU+5}, v{vals[i]} offset:{384*(i//3)+2*(i%3)}\nds_write_b16_d16_hi v{vU+5}, v{vals[i]} offset:{384*((i+1)//3)+2*((i+1)%3)}")
        A(f"v_cvt_pk_bf16_f32 v{vals[8]}, v{vals[8]}, v{vals[8]}\nds_write_b16 v{vU+5}, v{vals[8]} offset:{768+4}")
        A(f"s_mul_i32 s{sA}, s{sWAVE}, 2304\ns_add_u32 s{sA}, s{sA}, {L_HB}\nv_add_u32 v{vU+15}, s{sA}, v{vU+15}")
        A("s_waitcnt lgkmcnt(0)\ns_barrier")
        for i in range(9): A(f"ds_write_b32 v{vU+15}, v{Hh+i} offset:{768*(i//3)+4*(i%3)}")
        A("s_branch L_ffn_b1d\nL_ffn_b1:\ns_barrier\nL_ffn_b1d:")
        for s in range(18):
            A(f"ds_read_b128 {vr(X+4*s)}, v{vU} offset:{64*s}")
            if s >= 12:
                k = s - 12
                A(f"s_waitcnt lgkmcnt(12)")
                A(f"v_mfma_f32_16x16x32_bf16 {vr(Dg)}, {vr(X+4*k)}, {ar(4*k)}, {'0' if k == 0 else vr(Dg)}")
                A(f"v_mfma_f32_16x16x32_bf16 {vr(Du)}, {vr(X+4*k)}, {ar(72+4*k)}, {'0' if k == 0 else vr(Du)}")
        for k in range(6, 18):
            A(f"s_waitcnt lgkmcnt({17-k})")
            A(f"v_mfma_f32_16x16x32_bf16 {vr(Dg)}, {vr(X+4*k)}, {ar(4*k)}, {vr(Dg)}")
            A(f"v_mfma_f32_16x16x32_bf16 {vr(Du)}, {vr(X+4*k)}, {ar(72+4*k)}, {vr(Du)}")
        a, b = vT, vT + 1
        A(f"v_cndmask_b32 v{a}, v{Dg}, v{Dg+1}, s[{sM0}:{sM1}]\nv_cndmask_b32 v{b}, v{Du}, v{Du+1}, s[{sM0}:{sM1}]")
        self.rnd2(a, b, a, b, vT + 2)
        A(f"v_mul_f32 v{vT+2}, s{sLOG2E}, v{a}\nv_sub_f32 v{vT+2}, 0, v{vT+2}\nv_exp_f32 v{vT+2}, v{vT+2}\nv_add_f32 v{vT+2}, 1.0, v{vT+2}\nv_rcp_f32 v{vT+2}, v{vT+2}\nv_mul_f32 v{a}, v{a}, v{vT+2}")
        self.rnd(a, a)
        A(f"v_mul_f32 v{a}, v{a}, v{b}\nv_cvt_pk_bf16_f32 v{a}, v{a}, v{a}\nds_write_b16 v{vU+2}, v{a}")
        A(f"s_mul_i32 s{sA}, s{sWAVE}, {18*4608}\ns_lshl_b32 s{sB}, s{sI0}, 6\ns_add_u32 s{sA}, s{sA}, s{sB}\ns_add_u32 s{sA}, s{sA}, {WS_RP}\ns_add_u32 s{sB}, s{sA}, {8*4608}\ns_add_u32 s{sC}, s{sA}, {16*4608}")
        A("s_waitcnt lgkmcnt(0)\ns_barrier")
        A(f"ds_read_b128 {vr(X)}, v{vU+1}\nds_read_b128 {vr(X+4)}, v{vU+1} offset:64")
        Dd = X + 8
        A("s_waitcnt lgkmcnt(1)")
        for j in range(9): A(f"v_mfma_f32_16x16x32_bf16 {vr(Dd+4*j)}, {vr(X)}, {ar(144+8*j)}, 0")
        A("s_waitcnt lgkmcnt(0)")
        for j in range(9): A(f"v_mfma_f32_16x16x32_bf16 {vr(Dd+4*j)}, {vr(X+4)}, {ar(144+8*j+4)}, {vr(Dd+4*j)}")
        for st, (vo, so) in enumerate(((vU + 3, sA), (vU + 3, sB), (vU + 4, sC))):
            d0 = Dd + 16 * st
            if st < 2:
                for j in range(1, 4):
                    for r in range(2): A(f"v_mov_b32_dpp v{d0+r}, v{d0+4*j+r} quad_perm:[0,1,2,3] row_mask:{1<<j:#x} bank_mask:0xf")
            self.tagw([d0, d0 + 1], f"s{sFF}")
            A(f"buffer_store_dwordx2 {vr(d0,2)}, v{vo}, {sr(RWS)}, s{so} offen sc1")
        self.stamp(6)
        A(f"s_cmp_lg_u32 s{sWAVE}, 0\ns_cbranch_scc1 L_finish")
        R = X
        self.srd(RWQ, sOUT, 2304)
        A(f"v_cmp_gt_u32 s[{sM0}:{sM1}], 32, v{vLANE}\nv_add_u32 v{vT}, 4096, v{vVOFF}\nv_mov_b32 v{vT+2}, {OOB:#x}\nv_cndmask_b32 v{vU+4}, v{vT+2}, v{vT}, s[{sM0}:{sM1}]")
        A(f"s_mul_i32 s{sA}, s{sI0}, 4608\ns_add_u32 s{sA}, s{sA}, {WS_RP}")
        A(f"v_and_b32 v{vT}, 1, v{vG}\nv_mul_u32_u24 v{vT}, 576, v{vT}\nv_lshrrev_b32 v{vT+1}, 1, v{vG}\nv_add_u32 v{vT}, v{vT}, v{vT+1}\nv_and_b32 v{vT+1}, 3, v{vLANE}\nv_lshl_add_u32 v{vT}, v{vT+1}, 1, v{vT}")
        A(f"s_lshl_b32 s{sB}, s{sI0}, 3\nv_add_u32 v{vT}, s{sB}, v{vT}\nv_lshlrev_b32 v{vU+2}, 2, v{vT}\nv_add_u32 v{vU+2}, {L_HB}, v{vU+2}\nds_read_b32 v{vU+5}, v{vU+2}")
        A(f"v_lshlrev_b32 v{vT}, 1, v{vT}\nv_and_b32 v{vT+1}, 12, v{vLANE}\nv_cmp_eq_u32 vcc, 0, v{vT+1}\nv_cndmask_b32 v{vU+3}, v{vT+2}, v{vT}, vcc")
        done = self.lab("rd")
        A("L_ragain:")
        for i in range(4): A(f"buffer_load_dwordx4 {vr(R+4*i)}, v{vVOFF}, {sr(RWS)}, s{sA} offen offset:{1024*i} sc1")
        A(f"buffer_load_dwordx4 {vr(R+16)}, v{vU+4}, {sr(RWS)}, s{sA} offen sc1")
        A("s_waitcnt vmcnt(0)")
        for i in range(4): A(f"v_cndmask_b32 v{R+20+i}, v{vTAG}, v{R+16+i}, s[{sM0}:{sM1}]")
        self.check(list(range(R, R + 16)) + list(range(R + 20, R + 24)), f"s{sFF}", vT)
        self.retry("L_ragain", done)
        A.label(done)
        self.stamp(7)
        for r in range(4): A(f"v_add_f32 v{R+r}, v{R+r}, v{R+4+r}\nv_add_f32 v{R+8+r}, v{R+8+r}, v{R+12+r}")
        for r in range(4): A(f"v_add_f32 v{R+r}, v{R+r}, v{R+16+r}")
        for r in range(4): A(f"v_add_f32 v{R+r}, v{R+r}, v{R+8+r}")
        A(f"v_permlane32_swap_b32 v{R}, v{R+2}\nv_permlane32_swap_b32 v{R+1}, v{R+3}\nv_add_f32 v{R}, v{R}, v{R+2}\nv_add_f32 v{R+1}, v{R+1}, v{R+3}")
        A(f"v_permlane16_swap_b32 v{R}, v{R+1}\nv_add_f32 v{R}, v{R}, v{R+1}")
        self.allred("v_add_f32", R, vT, ["row_ror:4", "row_ror:8"])
        self.rnd(R, R)
        A(f"s_waitcnt lgkmcnt(0)\nv_add_f32 v{R}, v{vU+5}, v{R}\nv_cvt_pk_bf16_f32 v{R}, v{R}, v{R}")
        A(f"buffer_store_short v{R}, v{vU+3}, {sr(RWQ)}, 0 offen")
        A(f"s_cmp_lg_u32 s{sI0}, 0\ns_cbranch_scc1 L_finish")
        A(f"v_mov_b32 v{vT+3}, {OOB:#x}\nv_cmp_eq_u32 vcc, 0, v{vLANE}\nv_cndmask_b32 v{vT}, v{vT+3}, v{vLANE}, vcc")
        A(f"s_add_u32 s{sA}, s{sEPO}, 1\nv_mov_b32 v{vT+1}, s{sA}\nbuffer_store_dword v{vT+1}, v{vT}, {sr(RWS)}, 0 offen offset:{WS_EPOCH} sc1")
    def finish(self):
        A = self.A
        A("L_finish:")
        if self.c["stamps"]:
            A("s_memrealtime s[10:11]\ns_getreg_b32 s12, hwreg(HW_REG_XCC_ID)\ns_waitcnt lgkmcnt(0)")
            B = vU + 100
            A(f"s_lshl_b32 s7, s2, 2\ns_add_u32 s7, s7, s{sWAVE}\ns_lshl_b32 s7, s7, 7\ns_add_u32 s7, s7, {WS_STAMP}")
            A(f"v_mov_b32 v{B}, 0")
            for i in range(8): A(f"v_writelane_b32 v{B}, s{STAMP_REGS[i]}, {i}")
            A(f"v_writelane_b32 v{B}, s10, 8\nv_writelane_b32 v{B}, s12, 9\nv_writelane_b32 v{B}, s{sROLE}, 10\nv_writelane_b32 v{B}, s{sSPIN}, 11")
            A(f"v_lshlrev_b32 v{B+1}, 2, v{vLANE}\nv_cmp_gt_u32 vcc, 32, v{vLANE}\nv_mov_b32 v{B+2}, {OOB:#x}\nv_cndmask_b32 v{B+1}, v{B+2}, v{B+1}, vcc")
            A(f"buffer_store_dword v{B}, v{B+1}, {sr(RWS)}, s7 offen")
        A("L_end:\ns_endpgm")

    def build(self):
        A = self.A
        self.prologue()
        A(f"s_cmp_eq_u32 s{sROLE}, {ROLE_FFN}\ns_cbranch_scc1 L_stage_ffn\ns_cmp_eq_u32 s{sROLE}, {ROLE_O}\ns_cbranch_scc1 L_stage_o")
        self.q_issue()
        A("L_staged:")
        self.q_finish()
        self.stream()
        self.publish_partial()
        self.tail_o()
        self.tail_ffn()
        A("s_branch L_finish\nL_stage_o:")
        self.stage_o()
        A("s_branch L_staged\nL_stage_ffn:")
        self.stage_ffn()
        A("s_branch L_staged")
        self.finish()
        body = A.finalize()
        tab = make_table(self.c)
        head = open("cdna_kernels/" + NAME + ".s.ref").read().split("; Override launch")[0]
        out = head + f"; @launch grid=(256,1,1) block=(256,1,1) lds={LDS_BYTES}\n"
        out += f'.amdgcn_target "amdgcn-amd-amdhsa--gfx950"\n.text\n.globl {NAME}_kernel\n.p2align 8\n.type {NAME}_kernel,@function\n{NAME}_kernel:\n'
        out += body
        out += ".p2align 4\n.type L_table,@object\nL_table:\n" + "".join(f".long {a:#x}, {b:#x}\n" for a, b in tab) + ".size L_table, 2048\n"
        out += f""".section .rodata,"a"
.p2align 6
.amdhsa_kernel {NAME}_kernel
  .amdhsa_next_free_vgpr 472
  .amdhsa_next_free_sgpr 102
  .amdhsa_accum_offset 256
  .amdhsa_group_segment_fixed_size 0
  .amdhsa_kernarg_size 96
  .amdhsa_user_sgpr_count 2
  .amdhsa_user_sgpr_kernarg_segment_ptr 1
  .amdhsa_system_sgpr_workgroup_id_x 1
  .amdhsa_float_denorm_mode_32 3
.end_amdhsa_kernel
"""
        return out

def generate(**cfg): return Gen(cfg).build()
if __name__ == "__main__":
    cfg = json.loads(sys.argv[2]) if len(sys.argv) > 2 else {}
    open(sys.argv[1], "w").write(generate(**cfg))
```

```python
import sys, json, struct
from asmlib import Asm

NAME = "sequential_preLN__gqa_block_cached__glu_gated_swiglu__decode"
DEF = dict(D=6, DS=8, WD=8, stamps=False, round_scores=True, counts=None, spin=200000, sleep=1, prefetch_code=True,
           nffn=(60, 60), no=(64, 64, 65), npl=(66, 66, 67), xffn=(60, 60, 59), xpl=(67, 67, 67, 66, 66),
           tilelog=False, nocomp=0, dyn=True, NB=11, chunks=(3, 2, 1), cstride=256, fake=False)

WS_EPOCH = 0x0
WS_QP = 0x1000
WS_ML = 0x30000
WS_OP = 0x40000
WS_AP = 0x80000
WS_RP = 0x90000
WS_CNT = 0xE4000
WS_STAMP = 0x100000
WS_LOG = 0x140000
WS_SIZE = 0x200000
OOB = 0x80000000
L_R1, L_R2 = 0, 73728
L_QST = L_R2
L_XN = 147456
L_OW = 150016
L_MLW = 154112
L_XO = 156160; XO_STRIDE = 1056
L_HB = 158272
L_ACT = 162880
L_MB = L_HB
NULL_TILE = 0x20000
LDS_BYTES = 163840
ROLE_PLAIN, ROLE_O, ROLE_FFN = 0, 1, 2
LOG2E = 0x3fb8aa3b
SCALE = struct.unpack("<I", struct.pack("<f", 128 ** -0.5))[0]
INV576 = struct.unpack("<I", struct.pack("<f", 1.0 / 576))[0]
EPS = struct.unpack("<I", struct.pack("<f", 1e-5))[0]

def make_table(cfg):
    rows = []
    ffn_i = o_i = y = x = 0
    for g in range(32):
        roles = [ROLE_PLAIN] * 8
        if g % 4 == 3:
            f = [(3 * x + k) % 8 for k in range(3)]; o = []
            cf, co, cp = list(cfg["xffn"]), [], list(cfg["xpl"]); x += 1
        else:
            f = [(2 * y + k) % 8 for k in range(2)]
            o = [(2 * y + 2 + k) % 8 for k in range(3)]
            cf, co, cp = list(cfg["nffn"]), list(cfg["no"]), list(cfg["npl"]); y += 1
        for j in f: roles[j] = ROLE_FFN
        for j in o: roles[j] = ROLE_O
        start = 0
        for j in range(8):
            if roles[j] == ROLE_FFN: n = cf.pop(0); idx = ffn_i; ffn_i += 1
            elif roles[j] == ROLE_O: n = co.pop(0); idx = (o_i // 9) * 16 + o_i % 9; o_i += 1
            else: n = cp.pop(0); idx = 0
            if cfg["dyn"]: start, n = 64 * j, 4 * cfg["NB"] + 3
            assert n >= 8
            rows.append((start | ((n >> 2) << 10) | ((n & 3) << 16) | (roles[j] << 24), idx))
            start += n
        assert cfg['dyn'] or start == 512, (g, start)
    assert ffn_i == 72 and o_i == 72
    return rows

def vr(b, n=4): return f"v[{b}:{b+n-1}]" if n > 1 else f"v{b}"
def ar(b, n=4): return f"a[{b}:{b+n-1}]" if n > 1 else f"a{b}"
def sr(b, n=4): return f"s[{b}:{b+n-1}]"

sX, sK, sV, sWQ, sWO, sW1, sW3, sW2, sOUT, sWS = 4, 6, 8, 10, 12, 16, 18, 20, 22, 26
RK, RV, RWS, RWA, RWB, RX, RWQ, RDYN = 28, 32, 36, 40, 44, 48, 52, 84
sWAVE, sTAG, sT0, sT1 = 56, 57, 58, 59
sCUR, sNXT, sTMP, sNB, sNS = 60, 61, 62, 63, 64
sA, sB, sC, sD, sE = 65, 66, 67, 68, 69
sROLE, sI0, sI1, sSPIN = 70, 71, 72, 73
sM0, sM1 = 74, 75
sHI, sSCALE, sLOG2E, sFF = 76, 77, 78, 79
sGRP, sSPLIT, sPC0, sDSO = 80, 81, 82, 88
sEPO = 89
sTK, sMBI, sCNT, sFK = 3, 14, 24, 15
STAMP_REGS = [90, 92, 94, 96, 98, 100, 6, 8, 10, 12]
vLANE, vKOFF, vVOFF = 1, 2, 3
vMASK = 4; vBQ = 8; vDK = 16; vS = 24; vACC = 32
vM, vL, vALPHA, vMC, vMX = 36, 37, 38, 39, 40
vT = 41
vBP = 48; vTAG, vDYN, vG, vQA = 56, 57, 58, 59
vLOG = 60
vRING = 64
vU = 128

class Gen:
    def __init__(self, cfg):
        self.c = dict(DEF); self.c.update(cfg)
        self.A = Asm(); self.nlab = 0; self.nstamp = 0
    def lab(self, p): self.nlab += 1; return f"L_{p}_{self.nlab}"
    def stamp(self, i):
        if self.c["stamps"]:
            r = STAMP_REGS[i]; self.A(f"s_memrealtime s[{r}:{r+1}]")
    def tlog(self):
        if not self.c["tilelog"]: return
        A = self.A; skip = self.lab("tl")
        A(f"s_cmp_lg_u32 s{sWAVE}, 1\ns_cbranch_scc1 {skip}\ns_memrealtime s[16:17]\ns_waitcnt lgkmcnt(0)\ns_mov_b32 m0, s18\nv_writelane_b32 v{vLOG}, s16, m0\ns_add_u32 s18, s18, 1\ns_min_u32 s18, s18, 63\n{skip}:")
    def srd(self, r, ptr, size, off=None):
        A = self.A
        if off is None: A(f"s_mov_b32 s{r}, s{ptr}\ns_mov_b32 s{r+1}, s{ptr+1}")
        else: A(f"s_add_u32 s{r}, s{ptr}, s{off}\ns_addc_u32 s{r+1}, s{ptr+1}, 0")
        A(f"s_mov_b32 s{r+2}, {size}\ns_mov_b32 s{r+3}, 0x20000")
    def rnd(self, d, s):
        self.A(f"v_cvt_pk_bf16_f32 v{d}, v{s}, v{s}\nv_and_b32 v{d}, s{sHI}, v{d}")
    def rnd2(self, da, db, a, b, t):
        self.A(f"v_cvt_pk_bf16_f32 v{t}, v{a}, v{b}\nv_lshlrev_b32 v{da}, 16, v{t}\nv_and_b32 v{db}, s{sHI}, v{t}")
    def allred(self, op, v, t, steps):
        A = self.A
        for s in steps:
            if s == "p16": A(f"v_mov_b32 v{t}, v{v}\nv_permlane16_swap_b32 v{v}, v{t}\n{op} v{v}, v{v}, v{t}")
            elif s == "p32": A(f"v_mov_b32 v{t}, v{v}\nv_permlane32_swap_b32 v{v}, v{t}\n{op} v{v}, v{v}, v{t}")
            else: A(f"{op}_dpp v{v}, v{v}, v{v} {s} row_mask:0xf bank_mask:0xf")
    Q1, Q2, HM, RM = "quad_perm:[1,0,3,2]", "quad_perm:[2,3,0,1]", "row_half_mirror", "row_mirror"
    def layernorm(self, vals, steps, t0):
        A = self.A; s, q, t, u = t0, t0 + 1, t0 + 2, t0 + 3
        A(f"v_add_f32 v{s}, v{vals[0]}, v{vals[1]}\nv_add_f32 v{q}, v{vals[2]}, v{vals[3]}")
        for i, v in enumerate(vals[4:]): A(f"v_add_f32 v{(s, q)[i & 1]}, v{(s, q)[i & 1]}, v{v}")
        A(f"v_add_f32 v{s}, v{s}, v{q}")
        self.allred("v_add_f32", s, t, steps)
        A(f"v_mul_f32 v{s}, {INV576:#x}, v{s}")
        for i, v in enumerate(vals):
            A(f"v_sub_f32 v{t}, v{v}, v{s}")
            if i < 2: A(f"v_mul_f32 v{(q, u)[i]}, v{t}, v{t}")
            else: A(f"v_fmac_f32 v{(q, u)[i & 1]}, v{t}, v{t}")
        A(f"v_add_f32 v{q}, v{q}, v{u}")
        self.allred("v_add_f32", q, t, steps)
        A(f"v_mul_f32 v{q}, {INV576:#x}, v{q}")
        self.rnd2(s, q, s, q, t)
        A(f"v_add_f32 v{q}, {EPS:#x}, v{q}"); self.rnd(q, q)
        A(f"v_sqrt_f32 v{q}, v{q}"); self.rnd(q, q)
        A(f"v_rcp_f32 v{q}, v{q}")
        for v in vals: A(f"v_sub_f32 v{v}, v{v}, v{s}")
        for i in range(0, len(vals) - 1, 2): self.rnd2(vals[i], vals[i+1], vals[i], vals[i+1], t)
        if len(vals) & 1: self.rnd(vals[-1], vals[-1])
        for v in vals: A(f"v_mul_f32 v{v}, v{v}, v{q}")
    def tagw(self, regs, mask):
        for r in regs: self.A(f"v_bfi_b32 v{r}, {mask}, v{vTAG}, v{r}")
    def check(self, regs, mask, t, tag=None):
        A = self.A; tag = vTAG if tag is None else tag
        for r in regs: A(f"v_xor_b32 v{r}, v{r}, v{tag}")
        A(f"v_or_b32 v{t}, v{regs[0]}, v{regs[1]}\nv_or_b32 v{t+1}, v{regs[2]}, v{regs[3]}")
        rest = list(regs[4:]); i = 0
        while rest:
            if len(rest) >= 2: A(f"v_or3_b32 v{t+i}, v{t+i}, v{rest[0]}, v{rest[1]}"); rest = rest[2:]
            else: A(f"v_or_b32 v{t+i}, v{t+i}, v{rest[0]}"); rest = []
            i ^= 1
        A(f"v_or_b32 v{t}, v{t}, v{t+1}\nv_and_b32 v{t}, {mask}, v{t}\nv_cmp_ne_u32 vcc, 0, v{t}")
    def retry(self, again, done):
        A = self.A
        A(f"s_cbranch_vccz {done}\ns_sub_u32 s{sSPIN}, s{sSPIN}, 1\ns_cmp_eq_u32 s{sSPIN}, 0\ns_cbranch_scc1 {done}")
        if self.c["sleep"]: A(f"s_sleep {self.c['sleep']}")
        A(f"s_branch {again}")
    def dma(self, voff, srd, soff, ldsaddr_sreg_plus, pol="nt"):
        base, imm = ldsaddr_sreg_plus
        self.A(f"s_add_u32 m0, s{base}, {imm}\nbuffer_load_dwordx4 v{voff}, {sr(srd)}, s{soff} offen {pol} lds")

    def prologue(self):
        A = self.A; c = self.c
        A(f"s_cmp_ge_u32 s2, 256\ns_cbranch_scc1 L_end")
        A("s_load_dwordx16 s[4:19], s[0:1], 0\ns_load_dwordx8 s[20:27], s[0:1], 64")
        A(f"s_getpc_b64 s[{sPC0}:{sPC0+1}]\nL_pc:")
        A(f"s_lshl_b32 s{sA}, s2, 3\ns_add_u32 s{sA}, s{sA}, L_table-L_pc")
        A(f"s_load_dwordx2 s[{sT0}:{sT1}], s[{sPC0}:{sPC0+1}], s{sA}")
        self.stamp(0)
        A(f"v_and_b32 v{vLANE}, 63, v0\nv_lshrrev_b32 v{vT}, 6, v0\nv_readfirstlane_b32 s{sWAVE}, v{vT}")
        A(f"s_mov_b32 s{sHI}, 0xffff0000\ns_mov_b32 s{sSCALE}, {SCALE:#x}\ns_mov_b32 s{sLOG2E}, {LOG2E:#x}\ns_mov_b32 s{sFF}, 0xff")
        A(f"s_mov_b32 s{sSPIN}, {c['spin']}\ns_lshr_b32 s{sGRP}, s2, 3\ns_and_b32 s{sSPLIT}, s2, 7")
        A(f"v_lshrrev_b32 v{vG}, 4, v{vLANE}\nv_lshlrev_b32 v{vVOFF}, 4, v{vLANE}")
        A(f"v_lshrrev_b32 v{vT}, 5, v{vLANE}\nv_mul_u32_u24 v{vT}, 1152, v{vT}\nv_and_b32 v{vT+1}, 31, v{vLANE}\nv_mad_u32_u24 v{vU}, v{vT+1}, 12, v{vT}")
        A(f"v_lshrrev_b32 v{vT}, 3, v{vLANE}\nv_and_b32 v{vT+1}, 7, v{vLANE}\nv_lshlrev_b32 v{vT+1}, 4, v{vT+1}\nv_lshl_add_u32 v{vU+1}, v{vT}, 13, v{vT+1}")
        A(f"v_bfe_u32 v{vT}, v{vLANE}, 2, 2\nv_lshlrev_b32 v{vT}, 8, v{vT}\nv_lshl_add_u32 v{vT}, v{vG}, 6, v{vT}\nv_and_b32 v{vT+1}, 3, v{vLANE}\nv_lshl_add_u32 v{vKOFF}, v{vT+1}, 4, v{vT}")
        A(f"s_and_b32 s{sI0}, s2, 63\ns_lshr_b32 s{sI1}, s2, 6")
        A(f"s_mul_i32 s{sB}, s{sI1}, 160\ns_cmp_eq_u32 s{sI1}, 3\ns_cselect_b32 s{sB}, 448, s{sB}")
        A(f"s_lshl_b32 s{sC}, s{sWAVE}, 3\ns_add_u32 s{sC}, s{sC}, s{sB}\ns_lshl_b32 s{sC}, s{sC}, 13\ns_lshl_b32 s{sD}, s{sI0}, 7\ns_add_u32 s{sC}, s{sC}, s{sD}")
        A(f"s_lshl_b32 s{sE}, s{sWAVE}, 10\ns_add_u32 s{sE}, s{sE}, {L_QST}")
        A(f"s_lshl_b32 s{sA}, s{sGRP}, 23")
        A("s_waitcnt lgkmcnt(0)")
        self.srd(RX, sX, 2304)
        self.srd(RWQ, sWQ, 576 * 8192)
        A(f"s_load_dword s{sEPO}, s[{sWS}:{sWS+1}], {WS_EPOCH}")
        for t in range(3): A(f"buffer_load_dwordx3 {vr(vU+4+4*t,3)}, v{vU}, {sr(RX)}, 0 offen offset:{384*t}")
        for j in range(5):
            if j == 4: A(f"s_cmp_lt_u32 s{sI1}, 2\ns_cselect_b32 s{sC}, s{sC}, {OOB:#x}")
            self.dma(vU + 1, RWQ, sC, (sE, 4096 * j))
            if j < 4: A(f"s_add_u32 s{sC}, s{sC}, {32*8192}")
        self.srd(RK, sK, 1 << 23, sA); self.srd(RV, sV, 1 << 23, sA); self.srd(RWS, sWS, WS_SIZE)
        if c["dyn"]:
            A(f"s_lshr_b32 s{sA}, s2, 2\ns_mul_i32 s{sA}, s{sA}, {c['cstride']}\ns_add_u32 s{sA}, s{sA}, {WS_CNT}")
            A(f"s_and_b32 s{sB}, s2, 0x83\ns_or_b32 s{sB}, s{sB}, s{sWAVE}\ns_cmp_eq_u32 s{sB}, 0\ns_cselect_b32 s{sA}, s{sA}, {OOB:#x}")
            A(f"v_mov_b32 v{vT}, 0\nv_cmp_eq_u32 vcc, 0, v{vLANE}\nv_mov_b32 v{vT+1}, {OOB>>1:#x}\nv_cndmask_b32 v{vT+1}, v{vT+1}, v{vT}, vcc")
            A(f"buffer_store_dword v{vT}, v{vT+1}, {sr(RWS)}, s{sA} offen sc1")
            A(f"s_mul_i32 s{sB}, s{sI1}, 160\ns_cmp_eq_u32 s{sI1}, 3\ns_cselect_b32 s{sB}, 448, s{sB}")
            A(f"s_mov_b32 s{sFK}, 0")
            A(f"s_mul_i32 s{sA}, s{sGRP}, {c['cstride']}\ns_add_u32 s{sA}, s{sA}, {WS_CNT}\ns_add_u32 s{sCNT}, s{sWS}, s{sA}\ns_addc_u32 s{sCNT+1}, s{sWS+1}, 0")
            A(f"s_lshl_b32 s{sA}, s{sSPLIT}, 6\ns_add_u32 s{sA}, s{sA}, {4*c['NB']}\nv_add_u32 v{vT}, s{sA}, v{vLANE}\nv_cmp_gt_u32 vcc, 3, v{vLANE}\nv_cndmask_b32 v{vT}, -1, v{vT}, vcc")
            A(f"v_lshlrev_b32 v{vT+1}, 2, v{vLANE}\nv_add_u32 v{vT+1}, {L_MB}, v{vT+1}\nv_mov_b32 v{vT+2}, -1\nds_write_b32 v{vT+1}, v{vT}\nds_write_b32 v{vT+1}, v{vT+2} offset:256\nds_write_b32 v{vT+1}, v{vT+2} offset:512")
        A(f"s_and_b32 s{sCUR}, s{sT0}, 0x3ff\ns_lshl_b32 s{sCUR}, s{sCUR}, 14\ns_lshl_b32 s{sA}, s{sWAVE}, 12\ns_add_u32 s{sCUR}, s{sCUR}, s{sA}")
        A(f"s_bfe_u32 s{sNB}, s{sT0}, 0x6000a\ns_bfe_u32 s{sNS}, s{sT0}, 0x80010\ns_lshr_b32 s{sROLE}, s{sT0}, 24")
        for n in range(8): self.kload_first(n)
        if c["prefetch_code"]:
            A(f"s_lshr_b32 s{sA}, s2, 3\ns_lshl_b32 s{sA}, s{sA}, 2\ns_add_u32 s{sA}, s{sA}, s{sWAVE}\ns_lshl_b32 s{sA}, s{sA}, 10")
            A(f"s_min_u32 s{sA}, s{sA}, L_table-L_pc-1024\nv_add_u32 v{vT}, s{sA}, v{vVOFF}")
            A(f"global_load_dwordx4 {vr(vU+120)}, v{vT}, s[{sPC0}:{sPC0+1}]")
        ny = 8 + (1 if c["prefetch_code"] else 0)
        A(f"v_bfe_u32 v{vT}, v{vLANE}, 3, 1\nv_bfe_u32 v{vT+1}, v{vLANE}, 1, 1\nv_lshl_add_u32 v{vT}, v{vT}, 1, v{vT+1}")
        A(f"v_and_b32 v{vT+1}, 1, v{vLANE}\nv_cmp_eq_u32 vcc, 1, v{vT+1}\nv_mov_b32 v{vT+2}, 0xffff\nv_mov_b32 v{vT+3}, s{sHI}\nv_cndmask_b32 v{vT+2}, v{vT+2}, v{vT+3}, vcc")
        for r in range(4): A(f"v_cmp_eq_u32 vcc, {r}, v{vT}\nv_cndmask_b32 v{vMASK+r}, 0, v{vT+2}, vcc")
        A(f"s_waitcnt vmcnt({5 + ny + (1 if c['dyn'] else 0)})")
        vals = list(range(vU + 16, vU + 34))
        for t in range(3):
            for i in range(3):
                A(f"v_lshlrev_b32 v{vals[6*t+2*i]}, 16, v{vU+4+4*t+i}\nv_and_b32 v{vals[6*t+2*i+1]}, s{sHI}, v{vU+4+4*t+i}")
        self.layernorm(vals, [self.Q1, self.Q2, self.HM, self.RM, "p16"], vU + 36)
        A(f"v_add_u32 v{vU}, {L_XN}, v{vU}")
        for t in range(3):
            for i in range(3):
                A(f"v_cvt_pk_bf16_f32 v{vU+4+4*t+i}, v{vals[6*t+2*i]}, v{vals[6*t+2*i+1]}")
                A(f"ds_write_b32 v{vU}, v{vU+4+4*t+i} offset:{384*t+4*i}")
        A(f"v_and_b32 v{vT}, 1, v{vLANE}\nv_mul_u32_u24 v{vT}, 1152, v{vT}\nv_lshl_add_u32 v{vT}, v{vG}, 4, v{vT}\ns_lshl_b32 s{sB}, s{sB}, 1\ns_add_u32 s{sB}, s{sB}, {L_XN}\nv_add_u32 v{vU+2}, s{sB}, v{vT}")
        A(f"s_cmp_lt_u32 s{sI1}, 2\ns_cselect_b32 s{sB}, 256, 0\nv_add_u32 v{vU+3}, s{sB}, v{vU+2}")
        self.tr_base(vQA, 128)
        A(f"s_lshl_b32 s{sB}, s{sWAVE}, 5\ns_add_u32 s{sB}, s{sB}, {L_QST}\nv_add_u32 v{vU+1}, s{sB}, v{vQA}")
        A(f"s_waitcnt vmcnt({ny}) lgkmcnt(0)\ns_barrier")
        X = vU + 40; Wf = vU + 60; Dq = vU + 80
        for j in range(5):
            if j < 4: A(f"ds_read_b128 {vr(X+4*j)}, v{vU+2} offset:{64*j}")
            else: A(f"ds_read_b128 {vr(X+4*j)}, v{vU+3}")
            A(f"ds_read_b64_tr_b16 {vr(Wf+4*j,2)}, v{vU+1} offset:{4096*j}\nds_read_b64_tr_b16 {vr(Wf+4*j+2,2)}, v{vU+1} offset:{4096*j+512}")
        A(f"s_add_u32 s{sTAG}, s{sEPO}, 1\ns_and_b32 s{sTAG}, s{sTAG}, 0xff\nv_mov_b32 v{vTAG}, s{sTAG}")
        A(f"v_and_b32 v{vT}, 15, v{vLANE}\nv_lshlrev_b32 v{vT+1}, 14, v{vT}\nv_lshl_add_u32 v{vT+1}, v{vG}, 4, v{vT+1}\nv_cmp_gt_u32 vcc, 2, v{vT}\nv_mov_b32 v{vT+2}, {OOB:#x}\nv_cndmask_b32 v{vT+1}, v{vT+2}, v{vT+1}, vcc")
        A(f"s_lshl_b32 s{sB}, s{sI1}, 15\ns_lshl_b32 s{sC}, s{sI0}, 8\ns_add_u32 s{sB}, s{sB}, s{sC}\ns_lshl_b32 s{sC}, s{sWAVE}, 6\ns_add_u32 s{sB}, s{sB}, s{sC}\ns_add_u32 s{sB}, s{sB}, {WS_QP}")
        for j in range(5):
            A(f"s_waitcnt lgkmcnt({3*(4-j)})")
            A(f"v_mfma_f32_16x16x32_bf16 {vr(Dq)}, {vr(Wf+4*j)}, {vr(X+4*j)}, {'0' if j == 0 else vr(Dq)}")
        self.tagw(range(Dq, Dq + 4), 15)
        A(f"buffer_store_dwordx4 {vr(Dq)}, v{vT+1}, {sr(RWS)}, s{sB} offen sc1")
        self.stamp(1)
    def tr_base(self, d, stride):
        A = self.A
        A(f"v_bfe_u32 v{vT}, v{vLANE}, 2, 2\nv_lshl_add_u32 v{vT}, v{vG}, 3, v{vT}\nv_mul_u32_u24 v{vT}, {stride}, v{vT}\nv_and_b32 v{vT+1}, 3, v{vLANE}\nv_lshl_add_u32 v{d}, v{vT+1}, 3, v{vT}")
    def kload_first(self, n):
        A = self.A
        if n % 4 == 0 and n: A(f"s_add_u32 s{sTMP}, s{sCUR}, {16384*(n//4)}")
        so = sCUR if n < 4 else sTMP
        A(f"buffer_load_dwordx4 {vr(vRING+4*n)}, v{vKOFF}, {sr(RK)}, s{so} offen offset:{1024*(n%4)} nt")
    def q_issue(self, with_k=True):
        A = self.A
        if with_k:
            for n in range(8, 16): self.kload_first(n)
            A(f"v_bfe_u32 v{vT}, v{vLANE}, 3, 1\nv_lshlrev_b32 v{vT}, 16, v{vT}\nv_bfe_u32 v{vT+1}, v{vLANE}, 2, 1\nv_lshl_add_u32 v{vT}, v{vT+1}, 9, v{vT}")
            A(f"v_lshl_add_u32 v{vT}, v{vG}, 7, v{vT}\nv_and_b32 v{vT+1}, 3, v{vLANE}\nv_lshl_add_u32 v{vU}, v{vT+1}, 5, v{vT}")
            A(f"s_lshl_b32 s{sA}, s{sGRP}, 10\ns_add_u32 s{sA}, s{sA}, {WS_QP}\ns_add_u32 s{sB}, s{sA}, 32768")
        for i, so in enumerate((sA, sB)):
            A(f"buffer_load_dwordx4 {vr(vU+4+8*i)}, v{vU}, {sr(RWS)}, s{so} offen sc1\nbuffer_load_dwordx4 {vr(vU+8+8*i)}, v{vU}, {sr(RWS)}, s{so} offen offset:16 sc1")

    def dma_stream(self, items, state, between=None):
        A = self.A; WD = self.c["WD"]
        for k, (voff, srd, soff_expr, lds) in enumerate(items):
            if state[0] >= WD:
                A(f"s_waitcnt vmcnt({WD-1})"); state[0] = WD - 1
            sreg, add = soff_expr
            A(f"s_add_u32 s{sTMP}, s{sreg}, {add}")
            self.dma(voff, srd, sTMP, (sE, lds)); state[0] += 1
            if between: between(k)
    def tr_reads(self, areg, vaddr, offs):
        return [f"ds_read_b64_tr_b16 {ar(areg+2*i,2)}, v{vaddr} offset:{o}" for i, o in enumerate(offs)]
    def spread(self, lst, n):
        per = -(-len(lst) // n)
        def f(k):
            for x in lst[k*per:(k+1)*per]: self.A(x)
        return f
    def stage_o(self):
        A = self.A
        A(f"s_lshr_b32 s{sI0}, s{sT1}, 4\ns_and_b32 s{sI1}, s{sT1}, 15")
        self.srd(RWA, sWO, 4096 * 1152)
        A(f"v_lshrrev_b32 v{vT}, 3, v{vLANE}\nv_mul_u32_u24 v{vT}, 1152, v{vT}\nv_and_b32 v{vT+1}, 7, v{vLANE}\nv_lshl_add_u32 v{vU+1}, v{vT+1}, 4, v{vT}")
        A(f"s_lshl_b32 s{sC}, s{sI0}, 9\ns_lshl_b32 s{sD}, s{sWAVE}, 3\ns_add_u32 s{sC}, s{sC}, s{sD}\ns_mul_i32 s{sC}, s{sC}, 1152\ns_lshl_b32 s{sD}, s{sI1}, 7\ns_add_u32 s{sC}, s{sC}, s{sD}")
        A(f"s_lshl_b32 s{sE}, s{sWAVE}, 10")
        st = [9]
        self.dma_stream([(vU + 1, RWA, (sC, 32 * 1152 * j), L_R1 + 4096 * j) for j in range(16)], st)
        self.q_issue()
        A(f"s_lshl_b32 s{sD}, s{sWAVE}, 5\nv_add_u32 v{vU+1}, s{sD}, v{vQA}")
        A("s_waitcnt vmcnt(12)\ns_barrier")
        for x in self.tr_reads(0, vU + 1, [L_R1 + 4096 * (i // 2) + 512 * (i % 2) for i in range(32)]): A(x)
    def stage_ffn(self):
        A = self.A
        A(f"s_mov_b32 s{sI0}, s{sT1}")
        self.srd(RWA, sW1, 576 * 9216); self.srd(RWB, sW3, 576 * 9216)
        A(f"v_lshrrev_b32 v{vT}, 3, v{vLANE}\nv_mul_u32_u24 v{vT}, 9216, v{vT}\nv_and_b32 v{vT+1}, 7, v{vLANE}\nv_lshl_add_u32 v{vU+1}, v{vT+1}, 4, v{vT}")
        A(f"s_mul_i32 s{sC}, s{sWAVE}, {8*9216}\ns_lshl_b32 s{sD}, s{sI0}, 7\ns_add_u32 s{sC}, s{sC}, s{sD}")
        A(f"s_lshl_b32 s{sE}, s{sWAVE}, 10")
        A(f"s_lshl_b32 s{sD}, s{sWAVE}, 5\nv_add_u32 v{vU+2}, s{sD}, v{vQA}\nv_add_u32 v{vU+3}, {L_R2}, v{vU+2}")
        A("s_barrier")
        G = [(vU + 1, RWA, (sC, 32 * 9216 * j), L_R1 + 4096 * j) for j in range(18)]
        U = [(vU + 1, RWB, (sC, 32 * 9216 * j), L_R2 + 4096 * j) for j in range(18)]
        WD = self.c["WD"]; st = [9]
        def offs(): return [4096 * (i // 2) + 512 * (i % 2) for i in range(36)]
        def rd(areg, va, vb):
            o = offs(); out = []
            for i in range(36):
                if o[i] < 65536 - 4096: out.append(f"ds_read_b64_tr_b16 {ar(areg+2*i,2)}, v{va} offset:{o[i]}")
                else: out.append(f"ds_read_b64_tr_b16 {ar(areg+2*i,2)}, v{vb} offset:{o[i]-32768}")
            return out
        A(f"v_add_u32 v{vU+20}, 32768, v{vU+2}\nv_add_u32 v{vU+21}, 32768, v{vU+3}")
        self.dma_stream(G + U[:WD], st)
        A(f"s_waitcnt vmcnt({WD})\ns_barrier"); st[0] = min(st[0], WD)
        self.dma_stream(U[WD:], st, self.spread(rd(0, vU + 2, vU + 20), 18 - WD))
        A("s_waitcnt lgkmcnt(0)\ns_barrier")
        self.srd(RWA, sW2, 4608 * 1152)
        A(f"s_mul_i32 s{sC}, s{sI0}, {64*1152}\ns_lshl_b32 s{sD}, s{sWAVE}, 10\ns_add_u32 s{sC}, s{sC}, s{sD}")
        W2 = [(vVOFF, RWA, (sC, 4096 * j), L_R1 + 4096 * j) for j in range(18)]
        self.dma_stream(W2[:WD], st)
        A(f"s_waitcnt vmcnt({WD})\ns_barrier"); st[0] = min(st[0], WD)
        self.dma_stream(W2[WD:], st, self.spread(rd(72, vU + 3, vU + 21), 18 - WD))
        self.q_issue()
        self.tr_base(vU + 1, 1152)
        A(f"s_mul_i32 s{sD}, s{sWAVE}, 288\nv_add_u32 v{vU+1}, s{sD}, v{vU+1}")
        A("s_waitcnt vmcnt(12)\ns_barrier")
        for j in range(9):
            for s in range(2):
                for hh in range(2):
                    A(f"ds_read_b64_tr_b16 {ar(144+8*j+4*s+2*hh,2)}, v{vU+1} offset:{L_R1 + 36864*s + 4608*hh + 32*j}")
    def q_finish(self):
        A = self.A
        again, done = self.lab("qa"), self.lab("qd")
        A("s_waitcnt vmcnt(0)\ns_branch L_qchk\nL_qagain:")
        self.q_issue(with_k=False)
        A("s_waitcnt vmcnt(0)\nL_qchk:")
        R = list(range(vU + 4, vU + 20))
        A(f"v_and_b32 v{vT+2}, 15, v{vTAG}")
        self.check(R, 15, vT, vT + 2)
        self.retry("L_qagain", done)
        A.label(done)
        for i in range(8): A(f"v_add_f32 v{R[i]}, v{R[i]}, v{R[i+8]}")
        for i in range(8): A(f"v_add_f32_dpp v{R[i+8]}, v{R[i]}, v{R[i]} row_ror:8 row_mask:0xf bank_mask:0xf")
        for i in range(4): A(f"v_cvt_pk_bf16_f32 v{R[i]}, v{R[8+2*i]}, v{R[9+2*i]}")
        A(f"v_and_b32 v{vT}, 8, v{vLANE}\nv_cmp_eq_u32 vcc, 0, v{vT}")
        for i in range(4): A(f"v_cndmask_b32 v{vBQ+i}, 0, v{R[i]}, vcc")
        for i in range(4): A(f"v_sub_u32 v{vBQ+4+i}, v{R[i]}, v{vBQ+i}")
        for i in range(4): A(f"v_mov_b32 v{vACC+i}, 0")
        A(f"v_mov_b32 v{vM}, 0xff61b1e6\nv_mov_b32 v{vL}, 0\ns_waitcnt lgkmcnt(0)")
        self.stamp(2)
        if self.c["tilelog"]: A(f"s_mov_b32 s18, 0\nv_mov_b32 v{vLOG}, 0")
        self.tlog()

    def extract(self, t):
        d = vDK + 4 * (t & 1); s = vS + t
        o = [f"v_mov_b32_dpp v{s}, v{d} quad_perm:[0,0,0,0] row_mask:0xf bank_mask:0xf"]
        for r in range(1, 4): o.append(f"v_add_f32_dpp v{s}, v{d+r}, v{s} quad_perm:[{r},{r},{r},{r}] row_mask:0xf bank_mask:0xf")
        return o
    def roundp(self, t):
        a, b, x = vS + t, vS + t + 1, vT
        if not self.c["round_scores"]:
            return [f"v_mul_f32 v{a}, s{sSCALE}, v{a}", f"v_mul_f32 v{b}, s{sSCALE}, v{b}"]
        return [f"v_cvt_pk_bf16_f32 v{x}, v{a}, v{b}", f"v_lshlrev_b32 v{a}, 16, v{x}", f"v_and_b32 v{b}, s{sHI}, v{x}",
                f"v_mul_f32 v{a}, s{sSCALE}, v{a}", f"v_mul_f32 v{b}, s{sSCALE}, v{b}",
                f"v_cvt_pk_bf16_f32 v{x}, v{a}, v{b}", f"v_lshlrev_b32 v{a}, 16, v{x}", f"v_and_b32 v{b}, s{sHI}, v{x}"]
    def maxp(self, t):
        return [f"v_max3_f32 v{vMX}, v{vM if t == 0 else vMX}, v{vS+t}, v{vS+t+1}"]
    def pexp(self, t):
        s = vS + t
        return [f"v_fma_f32 v{s}, v{s}, s{sLOG2E}, v{vMC}", f"v_exp_f32 v{s}, v{s}", f"v_add_f32 v{vL}, v{vL}, v{s}", f"v_cvt_pk_bf16_f32 v{s}, v{s}, v{s}"]
    def bprep(self, n):
        p = vS + (n >> 1); b = vBP + 4 * (n & 1); o = []
        for r in range(4):
            if (r >> 1) == (n & 1): o.append(f"v_and_b32 v{b+r}, v{p}, v{vMASK+r}")
            else: o.append(f"v_and_b32_dpp v{b+r}, v{p}, v{vMASK+r} row_ror:8 row_mask:0xf bank_mask:0xf")
        return o
    def tile(self, NK, D, issue, first=False, part="both"):
        A0 = self.A; NT = NK // 2; nc = self.c["nocomp"]
        def A(text):
            for x in text.split("\n"):
                if nc >= 1 and x.startswith("v_") and not x.startswith("v_mfma"): continue
                if nc >= 2 and x.startswith("v_mfma"): continue
                A0(x)
        def emit(l):
            for x in l: A(x)
        if part in ("both", "k"):
            for n in range(NK):
                if not first: A(f"s_waitcnt vmcnt({D-1})")
                d = vDK + 4 * ((n >> 1) & 1)
                A(f"v_mfma_f32_16x16x32_bf16 {vr(d)}, {vr(vRING+4*(n%16))}, {vr(vBQ+4*(n&1))}, {'0' if n % 2 == 0 else vr(d)}")
                if not (first and n + D < NK): issue(n + D)
                if n >= 3 and n % 2 == 1: emit(self.extract((n - 3) // 2))
                if n >= 6 and n % 4 == 2: emit(self.roundp((n - 6) // 2)); emit(self.maxp((n - 6) // 2))
        if part in ("both", "v"):
            emit(self.extract(NT - 1)); emit(self.roundp(NT - 2)); emit(self.maxp(NT - 2))
            if not nc: self.allred("v_max_f32", vMX, vT, ["row_ror:8", "p16", "p32"])
            A(f"v_sub_f32 v{vALPHA}, v{vM}, v{vMX}\nv_mul_f32 v{vMC}, s{sLOG2E}, v{vMX}\nv_mul_f32 v{vALPHA}, s{sLOG2E}, v{vALPHA}\nv_sub_f32 v{vMC}, 0, v{vMC}")
            A(f"v_exp_f32 v{vALPHA}, v{vALPHA}\nv_mov_b32 v{vM}, v{vMX}\nv_mul_f32 v{vL}, v{vL}, v{vALPHA}")
            emit(self.pexp(0))
            for r in range(4): A(f"v_mul_f32 v{vACC+r}, v{vACC+r}, v{vALPHA}")
            emit(self.bprep(0))
            for n in range(NK):
                A(f"s_waitcnt vmcnt({D-1})")
                A(f"v_mfma_f32_16x16x32_bf16 {vr(vACC)}, {vr(vRING+4*((NK+n)%16))}, {vr(vBP+4*(n&1))}, {vr(vACC)}")
                issue(NK + n + D)
                if n % 2 == 0 and n // 2 + 1 < NT: emit(self.pexp(n // 2 + 1))
                if n + 1 < NK: emit(self.bprep(n + 1))
    def ld(self, slot, voff, srd, so, imm):
        self.A(f"buffer_load_dwordx4 {vr(vRING+4*slot)}, v{voff}, {sr(srd)}, s{so} offen offset:{imm} nt")
    def stream(self):
        A = self.A; D, DS = self.c["D"], self.c["DS"]
        assert 4 <= D <= 8 and D <= DS <= 8
        grp = [None]
        def big_issue(m):
            if m < 32:
                j = m % 16; voff, srd = (vKOFF, RK) if m < 16 else (vVOFF, RV)
                if j >= 4 and grp[0] != j // 4:
                    A(f"s_add_u32 s{sTMP}, s{sCUR}, {16384*(j//4)}"); grp[0] = j // 4
                self.ld(m % 16, voff, srd, sCUR if j < 4 else sTMP, 1024 * (j % 4))
            else:
                j = m - 32
                if j < 4: self.ld(j, vKOFF, RK, sNXT, 1024 * j)
                else: self.ld(j, vDYN, RDYN, sDSO, 1024 * (j % 4))
        def top():
            A(f"s_add_u32 s{sNXT}, s{sCUR}, 65536\ns_add_u32 s{sDSO}, s{sCUR}, {65536+16384}")
            A(f"s_cmp_gt_u32 s{sNB}, 1\ns_cselect_b64 s[{sM0}:{sM1}], -1, 0\ns_cselect_b32 s{RDYN}, s{RK}, s{RV}\ns_cselect_b32 s{RDYN+1}, s{RK+1}, s{RV+1}\ns_cselect_b32 s{sDSO}, s{sDSO}, s{sNXT}")
            A(f"v_cndmask_b32 v{vDYN}, v{vVOFF}, v{vKOFF}, s[{sM0}:{sM1}]")
            A(f"s_add_u32 s{sA}, s{sNB}, s{sNS}\ns_cmp_gt_u32 s{sA}, 1\ns_cselect_b32 s{sNXT}, s{sNXT}, {OOB:#x}\ns_cselect_b32 s{sDSO}, s{sDSO}, {OOB:#x}")
        A(f"s_mov_b32 s{RDYN+2}, {1<<23}\ns_mov_b32 s{RDYN+3}, 0x20000")
        top()
        self.tile(16, D, big_issue, first=True, part="k")
        at_mid = grp[0]; grp[0] = None
        A("s_branch L_mid\n.p2align 6\nL_big:")
        self.tile(16, D, big_issue, part="k")
        assert at_mid == grp[0] or D <= 4
        A("L_mid:")
        self.tile(16, D, big_issue, part="v")
        self.tlog()
        A(f"s_mov_b32 s{sCUR}, s{sNXT}\ns_sub_u32 s{sNB}, s{sNB}, 1\ns_cmp_eq_u32 s{sNB}, 0\ns_cbranch_scc1 L_small_entry")
        top()
        A("s_branch L_big\nL_small_entry:")
        self.stamp(8)
        A(f"s_cmp_eq_u32 s{sNS}, 0\ns_cbranch_scc1 L_stream_done")
        for j in range(D, DS): self.ld(j, vVOFF, RV, sCUR, 1024 * (j % 4))
        def small_issue(m):
            so = sCUR if m < 8 else sNXT; j = m % 8
            if j < 4: self.ld(j, vKOFF, RK, so, 1024 * j)
            else: self.ld(j, vVOFF, RV, so, 1024 * (j - 4))
        if not self.c["dyn"]:
            A("L_small:")
            A(f"s_add_u32 s{sNXT}, s{sCUR}, 16384\ns_cmp_gt_u32 s{sNS}, 1\ns_cselect_b32 s{sNXT}, s{sNXT}, {OOB:#x}")
            self.tile_small(DS, small_issue)
            A(f"s_mov_b32 s{sCUR}, s{sNXT}\ns_sub_u32 s{sNS}, s{sNS}, 1\ns_cmp_lg_u32 s{sNS}, 0\ns_cbranch_scc1 L_small")
        else:
            base = 4 * self.c["NB"] + 3
            ca, cb, cc = self.c["chunks"]
            assert base + 4 * ca + 2 * cb + cc == 64
            vMB = vBP
            sWR, sPEND = sT0, sNB
            A(f"s_mov_b32 s{sMBI}, {L_MB+4}\ns_mov_b32 s{sWR}, {L_MB+12}\ns_mov_b32 s{sPEND}, 0\ns_lshl_b32 s{sB}, s{sWAVE}, 12\nv_min_u32 v{vDYN}, 3, v{vLANE}")
            A(".p2align 6\nL_small:")
            A(f"v_mov_b32 v{vMB}, s{sMBI}\ns_cmp_lg_u32 s{sWAVE}, 0\ns_cbranch_scc1 L_mb_read")
            A(f"s_cmp_lg_u32 s{sPEND}, 1\ns_cbranch_scc1 L_mb_idle")
            A("s_waitcnt lgkmcnt(0)")
            if self.c["fake"]:
                A(f"s_lshl_b32 s{sTK}, s{sEPO+0}, 0" if False else f"s_lshl_b32 s{sTK}, s{sFK}, 3\ns_add_u32 s{sTK}, s{sTK}, s{sSPLIT}\ns_add_u32 s{sFK}, s{sFK}, 1")
            A(f"s_lshr_b32 s{sC}, s{sTK}, 3\ns_add_u32 s{sA}, s{sC}, {base + 3*ca + cb}\ns_mov_b32 s{sD}, 1")
            A(f"s_lshl_b32 s{sE}, s{sC}, 1\ns_add_u32 s{sE}, s{sE}, {base + 2*ca}\ns_cmp_lt_u32 s{sC}, {ca+cb}\ns_cselect_b32 s{sA}, s{sE}, s{sA}\ns_cselect_b32 s{sD}, 2, s{sD}")
            A(f"s_lshl_b32 s{sE}, s{sC}, 2\ns_add_u32 s{sE}, s{sE}, {base}\ns_cmp_lt_u32 s{sC}, {ca}\ns_cselect_b32 s{sA}, s{sE}, s{sA}\ns_cselect_b32 s{sD}, 4, s{sD}")
            A(f"s_and_b32 s{sE}, s{sTK}, 7\ns_lshl_b32 s{sE}, s{sE}, 6\ns_add_u32 s{sA}, s{sA}, s{sE}")
            A(f"s_cmp_lt_u32 s{sC}, {ca+cb+cc}\ns_cselect_b32 s{sA}, s{sA}, {NULL_TILE:#x}\ns_cselect_b32 s{sPEND}, 0, 2")
            A(f"v_add_u32 v{vMB+2}, s{sA}, v{vDYN}\nv_cmp_gt_u32 vcc, s{sD}, v{vDYN}\nv_lshl_add_u32 v{vMB+3}, v{vDYN}, 2, s{sWR}\nv_cndmask_b32 v{vMB+2}, -1, v{vMB+2}, vcc")
            A(f"s_lshl_b32 s{sD}, s{sD}, 2\ns_add_u32 s{sWR}, s{sWR}, s{sD}\nds_write_b32 v{vMB+3}, v{vMB+2}")
            A(f"L_mb_idle:\nds_read_b32 v{vMB+1}, v{vMB}\ns_add_u32 s{sA}, s{sMBI}, 8\ns_cmp_gt_u32 s{sWR}, s{sA}\ns_cbranch_scc1 L_mb_wait\ns_cmp_lg_u32 s{sPEND}, 0\ns_cbranch_scc1 L_mb_wait")
            A(f"s_waitcnt lgkmcnt(0)\ns_mov_b32 s{sTK}, 1\ns_mov_b32 s{sPEND}, 1")
            if self.c["fake"] != 2: A(f"s_atomic_add s{sTK}, s[{sCNT}:{sCNT+1}], 0 glc")
            A("s_branch L_mb_got")
            A(f"L_mb_read:\nds_read_b32 v{vMB+1}, v{vMB}")
            A(f"L_mb_wait:\ns_waitcnt lgkmcnt(0)\nL_mb_got:\nv_readfirstlane_b32 s{sNS}, v{vMB+1}\ns_cmp_lg_u32 s{sNS}, -1\ns_cbranch_scc1 L_mb_ok")
            A(f"s_sub_u32 s{sSPIN}, s{sSPIN}, 1\ns_cmp_lg_u32 s{sSPIN}, 0\ns_cbranch_scc1 L_mb_read\ns_mov_b32 s{sNS}, {NULL_TILE:#x}\ns_mov_b32 s{sSPIN}, 1")
            A(f"L_mb_ok:\ns_lshl_b32 s{sNXT}, s{sNS}, 14\ns_add_u32 s{sNXT}, s{sNXT}, s{sB}\ns_add_u32 s{sMBI}, s{sMBI}, 4")
            self.tile_small(DS, small_issue)
            self.tlog()
            A(f"s_mov_b32 s{sCUR}, s{sNXT}\ns_cmp_lt_u32 s{sNS}, 512\ns_cbranch_scc1 L_small")
        A("L_stream_done:")
    def tile_small(self, D, issue):
        A = self.A
        self.tile(4, D, issue)

    def publish_partial(self):
        A = self.A
        self.stamp(3)
        self.allred("v_add_f32", vL, vT, ["row_ror:8", "p16", "p32"])
        A(f"s_lshl_b32 s{sA}, s{sWAVE}, 10\ns_add_u32 s{sA}, s{sA}, {L_OW}\nv_add_u32 v{vU}, s{sA}, v{vVOFF}")
        A(f"s_lshl_b32 s{sA}, s{sWAVE}, 9\ns_add_u32 s{sA}, s{sA}, {L_MLW}\nv_lshl_add_u32 v{vU+1}, v{vLANE}, 3, s{sA}")
        A(f"ds_write_b128 v{vU}, {vr(vACC)}\nds_write_b64 v{vU+1}, {vr(vM,2)}")
        A("s_waitcnt vmcnt(0) lgkmcnt(0)\ns_barrier")
        self.stamp(9)
        A(f"s_cmp_lg_u32 s{sWAVE}, 0\ns_cbranch_scc1 L_dispatch")
        O = vU + 4; ML = vU + 20; F = vU + 28; R = vU + 32; G = vU + 36
        for w in range(4): A(f"ds_read_b64 {vr(ML+2*w,2)}, v{vU+1} offset:{512*w}")
        for w in range(4): A(f"ds_read_b128 {vr(O+4*w)}, v{vU} offset:{1024*w}")
        A(f"v_bfe_u32 v{vT}, v{vLANE}, 2, 1\nv_lshlrev_b32 v{vT+1}, 9, v{vT}\nv_lshl_add_u32 v{vT+1}, v{vG}, 7, v{vT+1}\nv_bfe_u32 v{vT+2}, v{vLANE}, 3, 1\nv_lshl_add_u32 v{vT+1}, v{vT+2}, 6, v{vT+1}")
        A(f"v_and_b32 v{vT+2}, 3, v{vLANE}\nv_lshl_add_u32 v{vU+2}, v{vT+2}, 4, v{vT+1}")
        A(f"v_lshlrev_b32 v{vT}, 7, v{vT}\nv_and_b32 v{vT+1}, 0x3b, v{vLANE}\nv_cmp_eq_u32 vcc, 0, v{vT+1}\nv_mov_b32 v{vT+2}, {OOB:#x}\nv_cndmask_b32 v{vU+3}, v{vT+2}, v{vT}, vcc")
        A(f"s_lshl_b32 s{sA}, s2, 10\ns_add_u32 s{sA}, s{sA}, {WS_OP}\ns_lshl_b32 s{sB}, s{sGRP}, 8\ns_lshl_b32 s{sC}, s{sSPLIT}, 4\ns_add_u32 s{sB}, s{sB}, s{sC}\ns_add_u32 s{sB}, s{sB}, {WS_ML}")
        A("s_waitcnt lgkmcnt(4)")
        A(f"v_max3_f32 v{G}, v{ML}, v{ML+2}, v{ML+4}\nv_max_f32 v{G}, v{G}, v{ML+6}")
        for w in range(4): A(f"v_sub_f32 v{F+w}, v{ML+2*w}, v{G}")
        for w in range(4): A(f"v_mul_f32 v{F+w}, s{sLOG2E}, v{F+w}")
        for w in range(4): A(f"v_exp_f32 v{F+w}, v{F+w}")
        A(f"v_mul_f32 v{G+1}, v{F}, v{ML+1}")
        for w in range(1, 4): A(f"v_fmac_f32 v{G+1}, v{F+w}, v{ML+2*w+1}")
        A("s_waitcnt lgkmcnt(0)")
        for r in range(4): A(f"v_mul_f32 v{R+r}, v{F}, v{O+r}")
        for w in range(1, 4):
            for r in range(4): A(f"v_fmac_f32 v{R+r}, v{F+w}, v{O+4*w+r}")
        self.tagw(range(R, R + 4), f"s{sFF}")
        A(f"buffer_store_dwordx4 {vr(R)}, v{vU+2}, {sr(RWS)}, s{sA} offen sc1")
        self.tagw([G, G + 1], f"s{sFF}")
        A(f"v_mov_b32 v{G+2}, v{G}\nv_mov_b32 v{G+3}, v{G+1}")
        A(f"buffer_store_dwordx4 {vr(G)}, v{vU+3}, {sr(RWS)}, s{sB} offen sc1")
        A("L_dispatch:")
        self.stamp(4)
        A(f"s_cmp_eq_u32 s{sROLE}, {ROLE_FFN}\ns_cbranch_scc1 L_tail_ffn\ns_cmp_eq_u32 s{sROLE}, {ROLE_PLAIN}\ns_cbranch_scc1 L_finish")
    def tail_o(self):
        A = self.A
        O = vU + 8; ML = vU + 40; X = vU + 48; Dq = vU + 44
        A(f"v_lshrrev_b32 v{vT}, 5, v{vLANE}\nv_and_b32 v{vT+1}, 31, v{vLANE}\nv_lshlrev_b32 v{vT+2}, 4, v{vT+1}\nv_lshl_add_u32 v{vU}, v{vT}, 17, v{vT+2}")
        A(f"v_and_b32 v{vT+2}, 7, v{vLANE}\nv_lshlrev_b32 v{vT+3}, 4, v{vT+2}\nv_lshl_add_u32 v{vU+1}, v{vT}, 12, v{vT+3}")
        A(f"v_mul_u32_u24 v{vT}, {XO_STRIDE}, v{vT}\nv_lshrrev_b32 v{vT+1}, 3, v{vT+1}\nv_lshl_add_u32 v{vT}, v{vT+1}, 6, v{vT}\nv_lshl_add_u32 v{vT}, v{vT+2}, 1, v{vT}")
        A(f"s_lshl_b32 s{sA}, s{sWAVE}, 8\ns_add_u32 s{sA}, s{sA}, {L_XO}\nv_add_u32 v{vU+2}, s{sA}, v{vT}")
        A(f"v_and_b32 v{vT}, 1, v{vLANE}\nv_mul_u32_u24 v{vT}, {XO_STRIDE}, v{vT}\nv_lshl_add_u32 v{vT}, v{vG}, 4, v{vT}\nv_add_u32 v{vU+3}, {L_XO}, v{vT}")
        A(f"v_and_b32 v{vT}, 15, v{vLANE}\nv_mul_u32_u24 v{vT+1}, 2304, v{vT}\nv_lshl_add_u32 v{vT+1}, v{vG}, 4, v{vT+1}\nv_cmp_gt_u32 vcc, 2, v{vT}\nv_mov_b32 v{vT+2}, {OOB:#x}\nv_cndmask_b32 v{vU+4}, v{vT+2}, v{vT+1}, vcc")
        A(f"s_lshl_b32 s{sA}, s{sI0}, 1\ns_lshr_b32 s{sB}, s{sWAVE}, 1\ns_add_u32 s{sA}, s{sA}, s{sB}\ns_and_b32 s{sB}, s{sWAVE}, 1")
        A(f"s_lshl_b32 s{sC}, s{sA}, 13\ns_lshl_b32 s{sD}, s{sB}, 9\ns_add_u32 s{sC}, s{sC}, s{sD}\ns_add_u32 s{sC}, s{sC}, {WS_OP}\ns_add_u32 s{sD}, s{sC}, 4096")
        A(f"s_lshl_b32 s{sA}, s{sA}, 8\ns_lshl_b32 s{sB}, s{sB}, 7\ns_add_u32 s{sA}, s{sA}, s{sB}\ns_add_u32 s{sA}, s{sA}, {WS_ML}")
        A(f"s_mul_i32 s{sB}, s{sI0}, 4608\ns_lshl_b32 s{sE}, s{sI1}, 8\ns_add_u32 s{sB}, s{sB}, s{sE}\ns_lshl_b32 s{sE}, s{sWAVE}, 6\ns_add_u32 s{sB}, s{sB}, s{sE}\ns_add_u32 s{sB}, s{sB}, {WS_AP}")
        done = self.lab("od")
        A("L_oagain:")
        A(f"buffer_load_dwordx4 {vr(ML)}, v{vU+1}, {sr(RWS)}, s{sA} offen sc1")
        for s in range(8): A(f"buffer_load_dwordx4 {vr(O+4*s)}, v{vU}, {sr(RWS)}, s{sC if s < 4 else sD} offen offset:{1024*(s%4)} sc1")
        A("s_waitcnt vmcnt(0)")
        self.check(list(range(O, O + 36)), f"s{sFF}", vT)
        self.retry("L_oagain", done)
        A.label(done)
        self.stamp(5)
        Mx, Wt, Ls = vT + 2, vT + 3, vT + 4
        A(f"v_mov_b32 v{Mx}, v{ML}")
        self.allred("v_max_f32", Mx, vT, [self.Q1, self.Q2, self.HM])
        A(f"v_sub_f32 v{Wt}, v{ML}, v{Mx}\nv_mul_f32 v{Wt}, s{sLOG2E}, v{Wt}\nv_exp_f32 v{Wt}, v{Wt}\nv_mul_f32 v{Ls}, v{Wt}, v{ML+1}")
        self.allred("v_add_f32", Ls, vT, [self.Q1, self.Q2, self.HM])
        A(f"v_rcp_f32 v{Ls}, v{Ls}\nv_mul_f32 v{Wt}, v{Wt}, v{Ls}")
        for r in range(4): A(f"v_mul_f32_dpp v{Dq+r}, v{Wt}, v{O+r} row_newbcast:0 row_mask:0xf bank_mask:0xf")
        for s in range(1, 8):
            for r in range(4): A(f"v_fmac_f32_dpp v{Dq+r}, v{Wt}, v{O+4*s+r} row_newbcast:{s} row_mask:0xf bank_mask:0xf")
        A(f"v_cvt_pk_bf16_f32 v{Dq}, v{Dq}, v{Dq+1}\nv_cvt_pk_bf16_f32 v{Dq+2}, v{Dq+2}, v{Dq+3}")
        A(f"ds_write_b16 v{vU+2}, v{Dq}\nds_write_b16_d16_hi v{vU+2}, v{Dq} offset:16\nds_write_b16 v{vU+2}, v{Dq+2} offset:32\nds_write_b16_d16_hi v{vU+2}, v{Dq+2} offset:48")
        A("s_waitcnt lgkmcnt(0)\ns_barrier")
        for s in range(16): A(f"ds_read_b128 {vr(X+4*s)}, v{vU+3} offset:{64*s}")
        for s in range(16):
            if s == 0: A("s_waitcnt lgkmcnt(15)")
            else: A(f"s_waitcnt lgkmcnt({15-s})")
            A(f"v_mfma_f32_16x16x32_bf16 {vr(Dq)}, {ar(4*s)}, {vr(X+4*s)}, {'0' if s == 0 else vr(Dq)}")
        self.tagw(range(Dq, Dq + 4), f"s{sFF}")
        A(f"buffer_store_dwordx4 {vr(Dq)}, v{vU+4}, {sr(RWS)}, s{sB} offen sc1")
        self.stamp(6)
        A("s_branch L_finish")
    def tail_ffn(self):
        A = self.A
        A("L_tail_ffn:")
        P = vU + 16; XV = vU + 6; X = vU + 40; Dg = vU + 112; Du = vU + 116; Hh = vU + 28
        pr = lambda pg, i: P + 12 * pg + 4 * (i // 3) + i % 3
        A(f"v_and_b32 v{vT}, 1, v{vLANE}\nv_mul_u32_u24 v{vT+1}, 1152, v{vT}\nv_lshl_add_u32 v{vT+1}, v{vG}, 4, v{vT+1}\nv_add_u32 v{vU}, {L_XN}, v{vT+1}")
        A(f"v_lshlrev_b32 v{vT+1}, 7, v{vT}\nv_lshl_add_u32 v{vT+1}, v{vG}, 4, v{vT+1}\nv_add_u32 v{vU+1}, {L_ACT}, v{vT+1}")
        A(f"v_and_b32 v{vT}, 1, v{vG}\nv_lshlrev_b32 v{vT}, 7, v{vT}\nv_and_b32 v{vT+1}, 15, v{vLANE}\nv_lshl_add_u32 v{vT}, v{vT+1}, 1, v{vT}")
        A(f"s_lshl_b32 s{sA}, s{sWAVE}, 5\ns_add_u32 s{sA}, s{sA}, {L_ACT}\nv_add_u32 v{vU+2}, s{sA}, v{vT}")
        A(f"v_lshrrev_b32 v{vT}, 3, v{vLANE}\nv_mul_u32_u24 v{vT}, 4608, v{vT}\nv_and_b32 v{vT+1}, 7, v{vLANE}\nv_lshl_add_u32 v{vU+3}, v{vT+1}, 3, v{vT}")
        A(f"v_cmp_gt_u32 vcc, 16, v{vLANE}\nv_mov_b32 v{vT+2}, {OOB:#x}\nv_cndmask_b32 v{vU+4}, v{vT+2}, v{vU+3}, vcc")
        A(f"v_and_b32 v{vT}, 16, v{vLANE}\nv_cmp_ne_u32 s[{sM0}:{sM1}], 0, v{vT}")
        A(f"s_cmp_ge_u32 s{sWAVE}, 2\ns_cbranch_scc1 L_ffn_b1")
        self.srd(RX, sX, 2304)
        A(f"v_mul_u32_u24 v{vU+5}, 6, v{vLANE}\ns_mul_i32 s{sA}, s{sWAVE}, 1152")
        for t in range(3):
            for i in range(3): A(f"buffer_load_ushort v{XV+3*t+i}, v{vU+5}, {sr(RX)}, s{sA} offen offset:{384*t+2*i}")
        A(f"v_lshlrev_b32 v{vU+15}, 1, v{vU+5}\ns_mul_i32 s{sB}, s{sWAVE}, 2304\ns_add_u32 s{sB}, s{sB}, {WS_AP}")
        done = self.lab("fd")
        A("L_fagain:")
        for pg in range(8):
            A(f"s_add_u32 s{sC}, s{sB}, {4608*pg}")
            for t in range(3): A(f"buffer_load_dwordx3 {vr(pr(pg,3*t),3)}, v{vU+15}, {sr(RWS)}, s{sC} offen offset:{768*t} sc1")
        A("s_waitcnt vmcnt(0)")
        self.check([pr(pg, i) for pg in range(8) for i in range(9)], f"s{sFF}", vT)
        self.retry("L_fagain", done)
        A.label(done)
        self.stamp(5)
        for st in (4, 2, 1):
            for pg in range(st):
                for i in range(9): A(f"v_add_f32 v{pr(pg,i)}, v{pr(pg,i)}, v{pr(pg+st,i)}")
        vals = [pr(0, i) for i in range(9)]
        for i in range(0, 8, 2): self.rnd2(vals[i], vals[i+1], vals[i], vals[i+1], vT)
        self.rnd(vals[8], vals[8])
        for i in range(9): A(f"v_lshlrev_b32 v{XV+i}, 16, v{XV+i}\nv_add_f32 v{vals[i]}, v{XV+i}, v{vals[i]}")
        for i in range(0, 8, 2): self.rnd2(vals[i], vals[i+1], vals[i], vals[i+1], vT)
        self.rnd(vals[8], vals[8])
        for i in range(9): A(f"v_mov_b32 v{Hh+i}, v{vals[i]}")
        self.layernorm(vals, [self.Q1, self.Q2, self.HM, self.RM, "p16", "p32"], vT)
        A(f"s_add_u32 s{sA}, s{sA}, {L_XN}\nv_add_u32 v{vU+5}, s{sA}, v{vU+5}")
        for i in range(0, 8, 2):
            A(f"v_cvt_pk_bf16_f32 v{vals[i]}, v{vals[i]}, v{vals[i+1]}")
            A(f"ds_write_b16 v{vU+5}, v{vals[i]} offset:{384*(i//3)+2*(i%3)}\nds_write_b16_d16_hi v{vU+5}, v{vals[i]} offset:{384*((i+1)//3)+2*((i+1)%3)}")
        A(f"v_cvt_pk_bf16_f32 v{vals[8]}, v{vals[8]}, v{vals[8]}\nds_write_b16 v{vU+5}, v{vals[8]} offset:{768+4}")
        A(f"s_mul_i32 s{sA}, s{sWAVE}, 2304\ns_add_u32 s{sA}, s{sA}, {L_HB}\nv_add_u32 v{vU+15}, s{sA}, v{vU+15}")
        A("s_waitcnt lgkmcnt(0)\ns_barrier")
        for i in range(9): A(f"ds_write_b32 v{vU+15}, v{Hh+i} offset:{768*(i//3)+4*(i%3)}")
        A("s_branch L_ffn_b1d\nL_ffn_b1:\ns_barrier\nL_ffn_b1d:")
        for s in range(18):
            A(f"ds_read_b128 {vr(X+4*s)}, v{vU} offset:{64*s}")
            if s >= 12:
                k = s - 12
                A(f"s_waitcnt lgkmcnt(12)")
                A(f"v_mfma_f32_16x16x32_bf16 {vr(Dg)}, {vr(X+4*k)}, {ar(4*k)}, {'0' if k == 0 else vr(Dg)}")
                A(f"v_mfma_f32_16x16x32_bf16 {vr(Du)}, {vr(X+4*k)}, {ar(72+4*k)}, {'0' if k == 0 else vr(Du)}")
        for k in range(6, 18):
            A(f"s_waitcnt lgkmcnt({17-k})")
            A(f"v_mfma_f32_16x16x32_bf16 {vr(Dg)}, {vr(X+4*k)}, {ar(4*k)}, {vr(Dg)}")
            A(f"v_mfma_f32_16x16x32_bf16 {vr(Du)}, {vr(X+4*k)}, {ar(72+4*k)}, {vr(Du)}")
        a, b = vT, vT + 1
        A(f"v_cndmask_b32 v{a}, v{Dg}, v{Dg+1}, s[{sM0}:{sM1}]\nv_cndmask_b32 v{b}, v{Du}, v{Du+1}, s[{sM0}:{sM1}]")
        self.rnd2(a, b, a, b, vT + 2)
        A(f"v_mul_f32 v{vT+2}, s{sLOG2E}, v{a}\nv_sub_f32 v{vT+2}, 0, v{vT+2}\nv_exp_f32 v{vT+2}, v{vT+2}\nv_add_f32 v{vT+2}, 1.0, v{vT+2}\nv_rcp_f32 v{vT+2}, v{vT+2}\nv_mul_f32 v{a}, v{a}, v{vT+2}")
        self.rnd(a, a)
        A(f"v_mul_f32 v{a}, v{a}, v{b}\nv_cvt_pk_bf16_f32 v{a}, v{a}, v{a}\nds_write_b16 v{vU+2}, v{a}")
        A(f"s_mul_i32 s{sA}, s{sWAVE}, {18*4608}\ns_lshl_b32 s{sB}, s{sI0}, 6\ns_add_u32 s{sA}, s{sA}, s{sB}\ns_add_u32 s{sA}, s{sA}, {WS_RP}\ns_add_u32 s{sB}, s{sA}, {8*4608}\ns_add_u32 s{sC}, s{sA}, {16*4608}")
        A("s_waitcnt lgkmcnt(0)\ns_barrier")
        A(f"ds_read_b128 {vr(X)}, v{vU+1}\nds_read_b128 {vr(X+4)}, v{vU+1} offset:64")
        Dd = X + 8
        A("s_waitcnt lgkmcnt(1)")
        for j in range(9): A(f"v_mfma_f32_16x16x32_bf16 {vr(Dd+4*j)}, {vr(X)}, {ar(144+8*j)}, 0")
        A("s_waitcnt lgkmcnt(0)")
        for j in range(9): A(f"v_mfma_f32_16x16x32_bf16 {vr(Dd+4*j)}, {vr(X+4)}, {ar(144+8*j+4)}, {vr(Dd+4*j)}")
        for st, (vo, so) in enumerate(((vU + 3, sA), (vU + 3, sB), (vU + 4, sC))):
            d0 = Dd + 16 * st
            if st < 2:
                for j in range(1, 4):
                    for r in range(2): A(f"v_mov_b32_dpp v{d0+r}, v{d0+4*j+r} quad_perm:[0,1,2,3] row_mask:{1<<j:#x} bank_mask:0xf")
            self.tagw([d0, d0 + 1], f"s{sFF}")
            A(f"buffer_store_dwordx2 {vr(d0,2)}, v{vo}, {sr(RWS)}, s{so} offen sc1")
        self.stamp(6)
        A(f"s_cmp_lg_u32 s{sWAVE}, 0\ns_cbranch_scc1 L_finish")
        R = X
        self.srd(RWQ, sOUT, 2304)
        A(f"v_cmp_gt_u32 s[{sM0}:{sM1}], 32, v{vLANE}\nv_add_u32 v{vT}, 4096, v{vVOFF}\nv_mov_b32 v{vT+2}, {OOB:#x}\nv_cndmask_b32 v{vU+4}, v{vT+2}, v{vT}, s[{sM0}:{sM1}]")
        A(f"s_mul_i32 s{sA}, s{sI0}, 4608\ns_add_u32 s{sA}, s{sA}, {WS_RP}")
        A(f"v_and_b32 v{vT}, 1, v{vG}\nv_mul_u32_u24 v{vT}, 576, v{vT}\nv_lshrrev_b32 v{vT+1}, 1, v{vG}\nv_add_u32 v{vT}, v{vT}, v{vT+1}\nv_and_b32 v{vT+1}, 3, v{vLANE}\nv_lshl_add_u32 v{vT}, v{vT+1}, 1, v{vT}")
        A(f"s_lshl_b32 s{sB}, s{sI0}, 3\nv_add_u32 v{vT}, s{sB}, v{vT}\nv_lshlrev_b32 v{vU+2}, 2, v{vT}\nv_add_u32 v{vU+2}, {L_HB}, v{vU+2}\nds_read_b32 v{vU+5}, v{vU+2}")
        A(f"v_lshlrev_b32 v{vT}, 1, v{vT}\nv_and_b32 v{vT+1}, 12, v{vLANE}\nv_cmp_eq_u32 vcc, 0, v{vT+1}\nv_cndmask_b32 v{vU+3}, v{vT+2}, v{vT}, vcc")
        done = self.lab("rd")
        A("L_ragain:")
        for i in range(4): A(f"buffer_load_dwordx4 {vr(R+4*i)}, v{vVOFF}, {sr(RWS)}, s{sA} offen offset:{1024*i} sc1")
        A(f"buffer_load_dwordx4 {vr(R+16)}, v{vU+4}, {sr(RWS)}, s{sA} offen sc1")
        A("s_waitcnt vmcnt(0)")
        for i in range(4): A(f"v_cndmask_b32 v{R+16+i}, v{vTAG}, v{R+16+i}, s[{sM0}:{sM1}]")
        self.check(list(range(R, R + 20)), f"s{sFF}", vT)
        self.retry("L_ragain", done)
        A.label(done)
        self.stamp(7)
        for r in range(4): A(f"v_add_f32 v{R+r}, v{R+r}, v{R+4+r}\nv_add_f32 v{R+8+r}, v{R+8+r}, v{R+12+r}")
        for r in range(4): A(f"v_add_f32 v{R+r}, v{R+r}, v{R+16+r}")
        for r in range(4): A(f"v_add_f32 v{R+r}, v{R+r}, v{R+8+r}")
        A(f"v_permlane32_swap_b32 v{R}, v{R+2}\nv_permlane32_swap_b32 v{R+1}, v{R+3}\nv_add_f32 v{R}, v{R}, v{R+2}\nv_add_f32 v{R+1}, v{R+1}, v{R+3}")
        A(f"v_permlane16_swap_b32 v{R}, v{R+1}\nv_add_f32 v{R}, v{R}, v{R+1}")
        self.allred("v_add_f32", R, vT, ["row_ror:4", "row_ror:8"])
        self.rnd(R, R)
        A(f"s_waitcnt lgkmcnt(0)\nv_add_f32 v{R}, v{vU+5}, v{R}\nv_cvt_pk_bf16_f32 v{R}, v{R}, v{R}")
        A(f"buffer_store_short v{R}, v{vU+3}, {sr(RWQ)}, 0 offen")
        A(f"s_cmp_lg_u32 s{sI0}, 0\ns_cbranch_scc1 L_finish")
        A(f"v_mov_b32 v{vT+3}, {OOB:#x}\nv_cmp_eq_u32 vcc, 0, v{vLANE}\nv_cndmask_b32 v{vT}, v{vT+3}, v{vLANE}, vcc")
        A(f"s_add_u32 s{sA}, s{sEPO}, 1\nv_mov_b32 v{vT+1}, s{sA}\nbuffer_store_dword v{vT+1}, v{vT}, {sr(RWS)}, 0 offen offset:{WS_EPOCH} sc1")
    def finish(self):
        A = self.A
        A("L_finish:")
        if self.c["tilelog"]:
            A(f"s_lshl_b32 s7, s2, 2\ns_add_u32 s7, s7, s{sWAVE}\ns_lshl_b32 s7, s7, 8\ns_add_u32 s7, s7, {WS_LOG}\nv_lshlrev_b32 v{vT}, 2, v{vLANE}")
            A(f"buffer_store_dword v{vLOG}, v{vT}, {sr(RWS)}, s7 offen")
        if self.c["stamps"]:
            A("s_memrealtime s[16:17]\ns_getreg_b32 s18, hwreg(HW_REG_XCC_ID)\ns_waitcnt lgkmcnt(0)")
            B = vU + 100
            A(f"s_lshl_b32 s7, s2, 2\ns_add_u32 s7, s7, s{sWAVE}\ns_lshl_b32 s7, s7, 7\ns_add_u32 s7, s7, {WS_STAMP}")
            A(f"v_mov_b32 v{B}, 0")
            for i in range(8): A(f"v_writelane_b32 v{B}, s{STAMP_REGS[i]}, {i}")
            A(f"v_writelane_b32 v{B}, s16, 8\nv_writelane_b32 v{B}, s18, 9\nv_writelane_b32 v{B}, s{sROLE}, 10\nv_writelane_b32 v{B}, s{sSPIN}, 11")
            A(f"v_writelane_b32 v{B}, s{sMBI}, 12\nv_writelane_b32 v{B}, s{STAMP_REGS[8]}, 13\nv_writelane_b32 v{B}, s{STAMP_REGS[9]}, 14")
            A(f"v_lshlrev_b32 v{B+1}, 2, v{vLANE}\nv_cmp_gt_u32 vcc, 32, v{vLANE}\nv_mov_b32 v{B+2}, {OOB:#x}\nv_cndmask_b32 v{B+1}, v{B+2}, v{B+1}, vcc")
            A(f"buffer_store_dword v{B}, v{B+1}, {sr(RWS)}, s7 offen")
        A("L_end:\ns_endpgm")

    def build(self):
        A = self.A
        self.prologue()
        A(f"s_cmp_eq_u32 s{sROLE}, {ROLE_FFN}\ns_cbranch_scc1 L_stage_ffn\ns_cmp_eq_u32 s{sROLE}, {ROLE_O}\ns_cbranch_scc1 L_stage_o")
        self.q_issue()
        A("L_staged:")
        self.q_finish()
        self.stream()
        self.publish_partial()
        self.tail_o()
        self.tail_ffn()
        A("s_branch L_finish\nL_stage_o:")
        self.stage_o()
        A("s_branch L_staged\nL_stage_ffn:")
        self.stage_ffn()
        A("s_branch L_staged")
        self.finish()
        body = A.finalize()
        tab = make_table(self.c)
        head = open("cdna_kernels/" + NAME + ".s.ref").read().split("; Override launch")[0]
        out = head + f"; @launch grid=(256,1,1) block=(256,1,1) lds={LDS_BYTES}\n"
        out += f'.amdgcn_target "amdgcn-amd-amdhsa--gfx950"\n.text\n.globl {NAME}_kernel\n.p2align 8\n.type {NAME}_kernel,@function\n{NAME}_kernel:\n'
        out += body
        out += ".p2align 4\n.type L_table,@object\nL_table:\n" + "".join(f".long {a:#x}, {b:#x}\n" for a, b in tab) + ".size L_table, 2048\n"
        out += f""".section .rodata,"a"
.p2align 6
.amdhsa_kernel {NAME}_kernel
  .amdhsa_next_free_vgpr 472
  .amdhsa_next_free_sgpr 102
  .amdhsa_accum_offset 256
  .amdhsa_group_segment_fixed_size 0
  .amdhsa_kernarg_size 96
  .amdhsa_user_sgpr_count 2
  .amdhsa_user_sgpr_kernarg_segment_ptr 1
  .amdhsa_system_sgpr_workgroup_id_x 1
  .amdhsa_float_denorm_mode_32 3
.end_amdhsa_kernel
"""
        return out

def generate(**cfg): return Gen(cfg).build()
if __name__ == "__main__":
    cfg = json.loads(sys.argv[2]) if len(sys.argv) > 2 else {}
    open(sys.argv[1], "w").write(generate(**cfg))
```

```python
import sys, json, struct
from asmlib import Asm

NAME = "sequential_preLN__gqa_block_cached__glu_gated_swiglu__decode"
DEF = dict(D=6, DS=8, WD=8, stamps=False, round_scores=True, counts=None, spin=200000, sleep=1, prefetch_code=True,
           nffn=(60, 60), no=(64, 64, 65), npl=(66, 66, 67), xffn=(60, 60, 59), xpl=(67, 67, 67, 66, 66),
           tilelog=False, kpol='nt', vpol='nt', dbg=False, pad=0, nocomp=0, dyn=True, NB=11, chunks=(3, 2, 1), cstride=256, fake=False)

WS_EPOCH = 0x0
WS_QP = 0x1000
WS_ML = 0x30000
WS_OP = 0x40000
WS_AP = 0x80000
WS_RP = 0x90000
WS_CNT = 0xE4000
WS_STAMP = 0x100000
WS_LOG = 0x140000
WS_SIZE = 0x200000
OOB = 0x80000000
L_R1, L_R2 = 0, 73728
L_QST = L_R2
L_XN = 147456
L_OW = 150016
L_MLW = 154112
L_XO = 156160; XO_STRIDE = 1056
L_HB = 158272
L_ACT = 162880
L_MB = L_HB
NULL_TILE = 0x20000
LDS_BYTES = 163840
ROLE_PLAIN, ROLE_O, ROLE_FFN = 0, 1, 2
LOG2E = 0x3fb8aa3b
SCALE = struct.unpack("<I", struct.pack("<f", 128 ** -0.5))[0]
INV576 = struct.unpack("<I", struct.pack("<f", 1.0 / 576))[0]
EPS = struct.unpack("<I", struct.pack("<f", 1e-5))[0]

def make_table(cfg):
    rows = []
    ffn_i = o_i = y = x = 0
    for g in range(32):
        roles = [ROLE_PLAIN] * 8
        if g % 4 == 3:
            f = [(3 * x + k) % 8 for k in range(3)]; o = []
            cf, co, cp = list(cfg["xffn"]), [], list(cfg["xpl"]); x += 1
        else:
            f = [(2 * y + k) % 8 for k in range(2)]
            o = [(2 * y + 2 + k) % 8 for k in range(3)]
            cf, co, cp = list(cfg["nffn"]), list(cfg["no"]), list(cfg["npl"]); y += 1
        for j in f: roles[j] = ROLE_FFN
        for j in o: roles[j] = ROLE_O
        start = 0
        for j in range(8):
            if roles[j] == ROLE_FFN: n = cf.pop(0); idx = ffn_i; ffn_i += 1
            elif roles[j] == ROLE_O: n = co.pop(0); idx = (o_i // 9) * 16 + o_i % 9; o_i += 1
            else: n = cp.pop(0); idx = 0
            if cfg["dyn"]: start, n = 64 * j, 4 * cfg["NB"] + 3
            assert n >= 8
            rows.append((start | ((n >> 2) << 10) | ((n & 3) << 16) | (roles[j] << 24), idx))
            start += n
        assert cfg['dyn'] or start == 512, (g, start)
    assert ffn_i == 72 and o_i == 72
    return rows

def vr(b, n=4): return f"v[{b}:{b+n-1}]" if n > 1 else f"v{b}"
def ar(b, n=4): return f"a[{b}:{b+n-1}]" if n > 1 else f"a{b}"
def sr(b, n=4): return f"s[{b}:{b+n-1}]"

sX, sK, sV, sWQ, sWO, sW1, sW3, sW2, sOUT, sWS = 4, 6, 8, 10, 12, 16, 18, 20, 22, 26
RK, RV, RWS, RWA, RWB, RX, RWQ, RDYN = 28, 32, 36, 40, 44, 48, 52, 84
sWAVE, sTAG, sT0, sT1 = 56, 57, 58, 59
sCUR, sNXT, sTMP, sNB, sNS = 60, 61, 62, 63, 64
sA, sB, sC, sD, sE = 65, 66, 67, 68, 69
sROLE, sI0, sI1, sSPIN = 70, 71, 72, 73
sM0, sM1 = 74, 75
sHI, sSCALE, sLOG2E, sFF = 76, 77, 78, 79
sGRP, sSPLIT, sPC0, sDSO = 80, 81, 82, 88
sEPO = 89
sTK, sMBI, sCNT, sFK = 3, 14, 24, 15
STAMP_REGS = [90, 92, 94, 96, 98, 100, 6, 8, 10, 12]
vLANE, vKOFF, vVOFF = 1, 2, 3
vMASK = 4; vBQ = 8; vDK = 16; vS = 24; vACC = 32
vM, vL, vALPHA, vMC, vMX = 36, 37, 38, 39, 40
vT = 41
vBP = 48; vTAG, vDYN, vG, vQA = 56, 57, 58, 59
vLOG = 60
vRING = 64
vU = 128

class Gen:
    def __init__(self, cfg):
        self.c = dict(DEF); self.c.update(cfg)
        self.A = Asm(); self.nlab = 0; self.nstamp = 0
    def lab(self, p): self.nlab += 1; return f"L_{p}_{self.nlab}"
    def stamp(self, i):
        if self.c["stamps"]:
            r = STAMP_REGS[i]; self.A(f"s_memrealtime s[{r}:{r+1}]")
    def tlog(self):
        if not self.c["tilelog"]: return
        A = self.A; skip = self.lab("tl")
        A(f"s_cmp_lg_u32 s{sWAVE}, 1\ns_cbranch_scc1 {skip}\ns_memrealtime s[16:17]\ns_waitcnt lgkmcnt(0)\ns_mov_b32 m0, s18\nv_writelane_b32 v{vLOG}, s16, m0\ns_add_u32 s18, s18, 1\ns_min_u32 s18, s18, 63\n{skip}:")
    def srd(self, r, ptr, size, off=None):
        A = self.A
        if off is None: A(f"s_mov_b32 s{r}, s{ptr}\ns_mov_b32 s{r+1}, s{ptr+1}")
        else: A(f"s_add_u32 s{r}, s{ptr}, s{off}\ns_addc_u32 s{r+1}, s{ptr+1}, 0")
        A(f"s_mov_b32 s{r+2}, {size}\ns_mov_b32 s{r+3}, 0x20000")
    def rnd(self, d, s):
        self.A(f"v_cvt_pk_bf16_f32 v{d}, v{s}, v{s}\nv_and_b32 v{d}, s{sHI}, v{d}")
    def rnd2(self, da, db, a, b, t):
        self.A(f"v_cvt_pk_bf16_f32 v{t}, v{a}, v{b}\nv_lshlrev_b32 v{da}, 16, v{t}\nv_and_b32 v{db}, s{sHI}, v{t}")
    def allred(self, op, v, t, steps):
        A = self.A
        for s in steps:
            if s == "p16": A(f"v_mov_b32 v{t}, v{v}\nv_permlane16_swap_b32 v{v}, v{t}\n{op} v{v}, v{v}, v{t}")
            elif s == "p32": A(f"v_mov_b32 v{t}, v{v}\nv_permlane32_swap_b32 v{v}, v{t}\n{op} v{v}, v{v}, v{t}")
            else: A(f"{op}_dpp v{v}, v{v}, v{v} {s} row_mask:0xf bank_mask:0xf")
    Q1, Q2, HM, RM = "quad_perm:[1,0,3,2]", "quad_perm:[2,3,0,1]", "row_half_mirror", "row_mirror"
    def layernorm(self, vals, steps, t0):
        A = self.A; s, q, t, u = t0, t0 + 1, t0 + 2, t0 + 3
        A(f"v_add_f32 v{s}, v{vals[0]}, v{vals[1]}\nv_add_f32 v{q}, v{vals[2]}, v{vals[3]}")
        for i, v in enumerate(vals[4:]): A(f"v_add_f32 v{(s, q)[i & 1]}, v{(s, q)[i & 1]}, v{v}")
        A(f"v_add_f32 v{s}, v{s}, v{q}")
        self.allred("v_add_f32", s, t, steps)
        A(f"v_mul_f32 v{s}, {INV576:#x}, v{s}")
        for i, v in enumerate(vals):
            A(f"v_sub_f32 v{t}, v{v}, v{s}")
            if i < 2: A(f"v_mul_f32 v{(q, u)[i]}, v{t}, v{t}")
            else: A(f"v_fmac_f32 v{(q, u)[i & 1]}, v{t}, v{t}")
        A(f"v_add_f32 v{q}, v{q}, v{u}")
        self.allred("v_add_f32", q, t, steps)
        A(f"v_mul_f32 v{q}, {INV576:#x}, v{q}")
        self.rnd2(s, q, s, q, t)
        A(f"v_add_f32 v{q}, {EPS:#x}, v{q}"); self.rnd(q, q)
        A(f"v_sqrt_f32 v{q}, v{q}"); self.rnd(q, q)
        A(f"v_rcp_f32 v{q}, v{q}")
        for v in vals: A(f"v_sub_f32 v{v}, v{v}, v{s}")
        for i in range(0, len(vals) - 1, 2): self.rnd2(vals[i], vals[i+1], vals[i], vals[i+1], t)
        if len(vals) & 1: self.rnd(vals[-1], vals[-1])
        for v in vals: A(f"v_mul_f32 v{v}, v{v}, v{q}")
    def tagw(self, regs, mask):
        for r in regs: self.A(f"v_bfi_b32 v{r}, {mask}, v{vTAG}, v{r}")
    def check(self, regs, mask, t, tag=None):
        A = self.A; tag = vTAG if tag is None else tag
        for r in regs: A(f"v_xor_b32 v{r}, v{r}, v{tag}")
        A(f"v_or_b32 v{t}, v{regs[0]}, v{regs[1]}\nv_or_b32 v{t+1}, v{regs[2]}, v{regs[3]}")
        rest = list(regs[4:]); i = 0
        while rest:
            if len(rest) >= 2: A(f"v_or3_b32 v{t+i}, v{t+i}, v{rest[0]}, v{rest[1]}"); rest = rest[2:]
            else: A(f"v_or_b32 v{t+i}, v{t+i}, v{rest[0]}"); rest = []
            i ^= 1
        A(f"v_or_b32 v{t}, v{t}, v{t+1}\nv_and_b32 v{t}, {mask}, v{t}\nv_cmp_ne_u32 vcc, 0, v{t}")
    def retry(self, again, done):
        A = self.A
        A(f"s_cbranch_vccz {done}\ns_sub_u32 s{sSPIN}, s{sSPIN}, 1\ns_cmp_eq_u32 s{sSPIN}, 0\ns_cbranch_scc1 {done}")
        if self.c["sleep"]: A(f"s_sleep {self.c['sleep']}")
        A(f"s_branch {again}")
    def dma(self, voff, srd, soff, ldsaddr_sreg_plus, pol="nt"):
        base, imm = ldsaddr_sreg_plus
        self.A(f"s_add_u32 m0, s{base}, {imm}\nbuffer_load_dwordx4 v{voff}, {sr(srd)}, s{soff} offen {pol} lds")

    def prologue(self):
        A = self.A; c = self.c
        A(f"s_cmp_ge_u32 s2, 256\ns_cbranch_scc1 L_end")
        A("s_load_dwordx16 s[4:19], s[0:1], 0\ns_load_dwordx8 s[20:27], s[0:1], 64")
        A(f"s_getpc_b64 s[{sPC0}:{sPC0+1}]\nL_pc:")
        A(f"s_lshl_b32 s{sA}, s2, 3\ns_add_u32 s{sA}, s{sA}, L_table-L_pc")
        A(f"s_load_dwordx2 s[{sT0}:{sT1}], s[{sPC0}:{sPC0+1}], s{sA}")
        self.stamp(0)
        A(f"v_and_b32 v{vLANE}, 63, v0\nv_lshrrev_b32 v{vT}, 6, v0\nv_readfirstlane_b32 s{sWAVE}, v{vT}")
        A(f"s_mov_b32 s{sHI}, 0xffff0000\ns_mov_b32 s{sSCALE}, {SCALE:#x}\ns_mov_b32 s{sLOG2E}, {LOG2E:#x}\ns_mov_b32 s{sFF}, 0xff")
        A(f"s_mov_b32 s{sSPIN}, {c['spin']}\ns_lshr_b32 s{sGRP}, s2, 3\ns_and_b32 s{sSPLIT}, s2, 7")
        A(f"v_lshrrev_b32 v{vG}, 4, v{vLANE}\nv_lshlrev_b32 v{vVOFF}, 4, v{vLANE}")
        A(f"v_lshrrev_b32 v{vT}, 5, v{vLANE}\nv_mul_u32_u24 v{vT}, 1152, v{vT}\nv_and_b32 v{vT+1}, 31, v{vLANE}\nv_mad_u32_u24 v{vU}, v{vT+1}, 12, v{vT}")
        A(f"v_lshrrev_b32 v{vT}, 3, v{vLANE}\nv_and_b32 v{vT+1}, 7, v{vLANE}\nv_lshlrev_b32 v{vT+1}, 4, v{vT+1}\nv_lshl_add_u32 v{vU+1}, v{vT}, 13, v{vT+1}")
        A(f"v_bfe_u32 v{vT}, v{vLANE}, 2, 2\nv_lshlrev_b32 v{vT}, 8, v{vT}\nv_lshl_add_u32 v{vT}, v{vG}, 6, v{vT}\nv_and_b32 v{vT+1}, 3, v{vLANE}\nv_lshl_add_u32 v{vKOFF}, v{vT+1}, 4, v{vT}")
        A(f"s_and_b32 s{sI0}, s2, 63\ns_lshr_b32 s{sI1}, s2, 6")
        A(f"s_mul_i32 s{sB}, s{sI1}, 160\ns_cmp_eq_u32 s{sI1}, 3\ns_cselect_b32 s{sB}, 448, s{sB}")
        A(f"s_lshl_b32 s{sC}, s{sWAVE}, 3\ns_add_u32 s{sC}, s{sC}, s{sB}\ns_lshl_b32 s{sC}, s{sC}, 13\ns_lshl_b32 s{sD}, s{sI0}, 7\ns_add_u32 s{sC}, s{sC}, s{sD}")
        A(f"s_lshl_b32 s{sE}, s{sWAVE}, 10\ns_add_u32 s{sE}, s{sE}, {L_QST}")
        A(f"s_lshl_b32 s{sA}, s{sGRP}, 23")
        A("s_waitcnt lgkmcnt(0)")
        if c["dbg"]:
            A("s_mov_b32 s100, s24\ns_mov_b32 s101, s25\ns_memtime s[98:99]\ns_memrealtime s[96:97]")
        self.srd(RX, sX, 2304)
        self.srd(RWQ, sWQ, 576 * 8192)
        A(f"s_load_dword s{sEPO}, s[{sWS}:{sWS+1}], {WS_EPOCH}")
        for t in range(3): A(f"buffer_load_dwordx3 {vr(vU+4+4*t,3)}, v{vU}, {sr(RX)}, 0 offen offset:{384*t}")
        for j in range(5):
            if j == 4: A(f"s_cmp_lt_u32 s{sI1}, 2\ns_cselect_b32 s{sC}, s{sC}, {OOB:#x}")
            self.dma(vU + 1, RWQ, sC, (sE, 4096 * j))
            if j < 4: A(f"s_add_u32 s{sC}, s{sC}, {32*8192}")
        self.srd(RK, sK, 1 << 23, sA); self.srd(RV, sV, 1 << 23, sA); self.srd(RWS, sWS, WS_SIZE)
        if c["dyn"]:
            A(f"s_lshr_b32 s{sA}, s2, 2\ns_mul_i32 s{sA}, s{sA}, {c['cstride']}\ns_add_u32 s{sA}, s{sA}, {WS_CNT}")
            A(f"s_and_b32 s{sB}, s2, 0x83\ns_or_b32 s{sB}, s{sB}, s{sWAVE}\ns_cmp_eq_u32 s{sB}, 0\ns_cselect_b32 s{sA}, s{sA}, {OOB:#x}")
            A(f"v_mov_b32 v{vT}, 0\nv_cmp_eq_u32 vcc, 0, v{vLANE}\nv_mov_b32 v{vT+1}, {OOB>>1:#x}\nv_cndmask_b32 v{vT+1}, v{vT+1}, v{vT}, vcc")
            A(f"buffer_store_dword v{vT}, v{vT+1}, {sr(RWS)}, s{sA} offen sc1")
            A(f"s_mul_i32 s{sB}, s{sI1}, 160\ns_cmp_eq_u32 s{sI1}, 3\ns_cselect_b32 s{sB}, 448, s{sB}")
            A(f"s_mov_b32 s{sFK}, 0")
            A(f"s_mul_i32 s{sA}, s{sGRP}, {c['cstride']}\ns_add_u32 s{sA}, s{sA}, {WS_CNT}\ns_add_u32 s{sCNT}, s{sWS}, s{sA}\ns_addc_u32 s{sCNT+1}, s{sWS+1}, 0")
            A(f"s_lshl_b32 s{sA}, s{sSPLIT}, 6\ns_add_u32 s{sA}, s{sA}, {4*c['NB']}\nv_add_u32 v{vT}, s{sA}, v{vLANE}\nv_cmp_gt_u32 vcc, 3, v{vLANE}\nv_cndmask_b32 v{vT}, -1, v{vT}, vcc")
            A(f"v_lshlrev_b32 v{vT+1}, 2, v{vLANE}\nv_add_u32 v{vT+1}, {L_MB}, v{vT+1}\nv_mov_b32 v{vT+2}, -1\nds_write_b32 v{vT+1}, v{vT}\nds_write_b32 v{vT+1}, v{vT+2} offset:256\nds_write_b32 v{vT+1}, v{vT+2} offset:512")
        A(f"s_and_b32 s{sCUR}, s{sT0}, 0x3ff\ns_lshl_b32 s{sCUR}, s{sCUR}, 14\ns_lshl_b32 s{sA}, s{sWAVE}, 12\ns_add_u32 s{sCUR}, s{sCUR}, s{sA}")
        A(f"s_bfe_u32 s{sNB}, s{sT0}, 0x6000a\ns_bfe_u32 s{sNS}, s{sT0}, 0x80010\ns_lshr_b32 s{sROLE}, s{sT0}, 24")
        for n in range(8): self.kload_first(n)
        if c["prefetch_code"]:
            A(f"s_lshr_b32 s{sA}, s2, 3\ns_lshl_b32 s{sA}, s{sA}, 2\ns_add_u32 s{sA}, s{sA}, s{sWAVE}\ns_lshl_b32 s{sA}, s{sA}, 10")
            A(f"s_min_u32 s{sA}, s{sA}, L_table-L_pc-1024\nv_add_u32 v{vT}, s{sA}, v{vVOFF}")
            A(f"global_load_dwordx4 {vr(vU+120)}, v{vT}, s[{sPC0}:{sPC0+1}]")
        ny = 8 + (1 if c["prefetch_code"] else 0)
        A(f"v_bfe_u32 v{vT}, v{vLANE}, 3, 1\nv_bfe_u32 v{vT+1}, v{vLANE}, 1, 1\nv_lshl_add_u32 v{vT}, v{vT}, 1, v{vT+1}")
        A(f"v_and_b32 v{vT+1}, 1, v{vLANE}\nv_cmp_eq_u32 vcc, 1, v{vT+1}\nv_mov_b32 v{vT+2}, 0xffff\nv_mov_b32 v{vT+3}, s{sHI}\nv_cndmask_b32 v{vT+2}, v{vT+2}, v{vT+3}, vcc")
        for r in range(4): A(f"v_cmp_eq_u32 vcc, {r}, v{vT}\nv_cndmask_b32 v{vMASK+r}, 0, v{vT+2}, vcc")
        A(f"s_waitcnt vmcnt({5 + ny + (1 if c['dyn'] else 0)})")
        vals = list(range(vU + 16, vU + 34))
        for t in range(3):
            for i in range(3):
                A(f"v_lshlrev_b32 v{vals[6*t+2*i]}, 16, v{vU+4+4*t+i}\nv_and_b32 v{vals[6*t+2*i+1]}, s{sHI}, v{vU+4+4*t+i}")
        self.layernorm(vals, [self.Q1, self.Q2, self.HM, self.RM, "p16"], vU + 36)
        A(f"v_add_u32 v{vU}, {L_XN}, v{vU}")
        for t in range(3):
            for i in range(3):
                A(f"v_cvt_pk_bf16_f32 v{vU+4+4*t+i}, v{vals[6*t+2*i]}, v{vals[6*t+2*i+1]}")
                A(f"ds_write_b32 v{vU}, v{vU+4+4*t+i} offset:{384*t+4*i}")
        A(f"v_and_b32 v{vT}, 1, v{vLANE}\nv_mul_u32_u24 v{vT}, 1152, v{vT}\nv_lshl_add_u32 v{vT}, v{vG}, 4, v{vT}\ns_lshl_b32 s{sB}, s{sB}, 1\ns_add_u32 s{sB}, s{sB}, {L_XN}\nv_add_u32 v{vU+2}, s{sB}, v{vT}")
        A(f"s_cmp_lt_u32 s{sI1}, 2\ns_cselect_b32 s{sB}, 256, 0\nv_add_u32 v{vU+3}, s{sB}, v{vU+2}")
        self.tr_base(vQA, 128)
        A(f"s_lshl_b32 s{sB}, s{sWAVE}, 5\ns_add_u32 s{sB}, s{sB}, {L_QST}\nv_add_u32 v{vU+1}, s{sB}, v{vQA}")
        A(f"s_waitcnt vmcnt({ny}) lgkmcnt(0)\ns_barrier")
        X = vU + 40; Wf = vU + 60; Dq = vU + 80
        for j in range(5):
            if j < 4: A(f"ds_read_b128 {vr(X+4*j)}, v{vU+2} offset:{64*j}")
            else: A(f"ds_read_b128 {vr(X+4*j)}, v{vU+3}")
            A(f"ds_read_b64_tr_b16 {vr(Wf+4*j,2)}, v{vU+1} offset:{4096*j}\nds_read_b64_tr_b16 {vr(Wf+4*j+2,2)}, v{vU+1} offset:{4096*j+512}")
        A(f"s_add_u32 s{sTAG}, s{sEPO}, 1\ns_and_b32 s{sTAG}, s{sTAG}, 0xff\nv_mov_b32 v{vTAG}, s{sTAG}")
        A(f"v_and_b32 v{vT}, 15, v{vLANE}\nv_lshlrev_b32 v{vT+1}, 14, v{vT}\nv_lshl_add_u32 v{vT+1}, v{vG}, 4, v{vT+1}\nv_cmp_gt_u32 vcc, 2, v{vT}\nv_mov_b32 v{vT+2}, {OOB:#x}\nv_cndmask_b32 v{vT+1}, v{vT+2}, v{vT+1}, vcc")
        A(f"s_lshl_b32 s{sB}, s{sI1}, 15\ns_lshl_b32 s{sC}, s{sI0}, 8\ns_add_u32 s{sB}, s{sB}, s{sC}\ns_lshl_b32 s{sC}, s{sWAVE}, 6\ns_add_u32 s{sB}, s{sB}, s{sC}\ns_add_u32 s{sB}, s{sB}, {WS_QP}")
        for j in range(5):
            A(f"s_waitcnt lgkmcnt({3*(4-j)})")
            A(f"v_mfma_f32_16x16x32_bf16 {vr(Dq)}, {vr(Wf+4*j)}, {vr(X+4*j)}, {'0' if j == 0 else vr(Dq)}")
        self.tagw(range(Dq, Dq + 4), 15)
        A(f"buffer_store_dwordx4 {vr(Dq)}, v{vT+1}, {sr(RWS)}, s{sB} offen sc1")
        self.stamp(1)
    def tr_base(self, d, stride):
        A = self.A
        A(f"v_bfe_u32 v{vT}, v{vLANE}, 2, 2\nv_lshl_add_u32 v{vT}, v{vG}, 3, v{vT}\nv_mul_u32_u24 v{vT}, {stride}, v{vT}\nv_and_b32 v{vT+1}, 3, v{vLANE}\nv_lshl_add_u32 v{d}, v{vT+1}, 3, v{vT}")
    def kload_first(self, n):
        A = self.A
        if n % 4 == 0 and n: A(f"s_add_u32 s{sTMP}, s{sCUR}, {16384*(n//4)}")
        so = sCUR if n < 4 else sTMP
        A(f"buffer_load_dwordx4 {vr(vRING+4*n)}, v{vKOFF}, {sr(RK)}, s{so} offen offset:{1024*(n%4)} nt")
    def q_issue(self, with_k=True):
        A = self.A
        if with_k:
            for n in range(8, 16): self.kload_first(n)
            A(f"v_bfe_u32 v{vT}, v{vLANE}, 3, 1\nv_lshlrev_b32 v{vT}, 16, v{vT}\nv_bfe_u32 v{vT+1}, v{vLANE}, 2, 1\nv_lshl_add_u32 v{vT}, v{vT+1}, 9, v{vT}")
            A(f"v_lshl_add_u32 v{vT}, v{vG}, 7, v{vT}\nv_and_b32 v{vT+1}, 3, v{vLANE}\nv_lshl_add_u32 v{vU}, v{vT+1}, 5, v{vT}")
            A(f"s_lshl_b32 s{sA}, s{sGRP}, 10\ns_add_u32 s{sA}, s{sA}, {WS_QP}\ns_add_u32 s{sB}, s{sA}, 32768")
        for i, so in enumerate((sA, sB)):
            A(f"buffer_load_dwordx4 {vr(vU+4+8*i)}, v{vU}, {sr(RWS)}, s{so} offen sc1\nbuffer_load_dwordx4 {vr(vU+8+8*i)}, v{vU}, {sr(RWS)}, s{so} offen offset:16 sc1")

    def dma_stream(self, items, state, between=None):
        A = self.A; WD = self.c["WD"]
        for k, (voff, srd, soff_expr, lds) in enumerate(items):
            if state[0] >= WD:
                A(f"s_waitcnt vmcnt({WD-1})"); state[0] = WD - 1
            sreg, add = soff_expr
            A(f"s_add_u32 s{sTMP}, s{sreg}, {add}")
            self.dma(voff, srd, sTMP, (sE, lds)); state[0] += 1
            if between: between(k)
    def tr_reads(self, areg, vaddr, offs):
        return [f"ds_read_b64_tr_b16 {ar(areg+2*i,2)}, v{vaddr} offset:{o}" for i, o in enumerate(offs)]
    def spread(self, lst, n):
        per = -(-len(lst) // n)
        def f(k):
            for x in lst[k*per:(k+1)*per]: self.A(x)
        return f
    def stage_o(self):
        A = self.A
        A(f"s_lshr_b32 s{sI0}, s{sT1}, 4\ns_and_b32 s{sI1}, s{sT1}, 15")
        self.srd(RWA, sWO, 4096 * 1152)
        A(f"v_lshrrev_b32 v{vT}, 3, v{vLANE}\nv_mul_u32_u24 v{vT}, 1152, v{vT}\nv_and_b32 v{vT+1}, 7, v{vLANE}\nv_lshl_add_u32 v{vU+1}, v{vT+1}, 4, v{vT}")
        A(f"s_lshl_b32 s{sC}, s{sI0}, 9\ns_lshl_b32 s{sD}, s{sWAVE}, 3\ns_add_u32 s{sC}, s{sC}, s{sD}\ns_mul_i32 s{sC}, s{sC}, 1152\ns_lshl_b32 s{sD}, s{sI1}, 7\ns_add_u32 s{sC}, s{sC}, s{sD}")
        A(f"s_lshl_b32 s{sE}, s{sWAVE}, 10")
        st = [9]
        self.dma_stream([(vU + 1, RWA, (sC, 32 * 1152 * j), L_R1 + 4096 * j) for j in range(16)], st)
        self.q_issue()
        A(f"s_lshl_b32 s{sD}, s{sWAVE}, 5\nv_add_u32 v{vU+1}, s{sD}, v{vQA}")
        A("s_waitcnt vmcnt(12)\ns_barrier")
        for x in self.tr_reads(0, vU + 1, [L_R1 + 4096 * (i // 2) + 512 * (i % 2) for i in range(32)]): A(x)
    def stage_ffn(self):
        A = self.A
        A(f"s_mov_b32 s{sI0}, s{sT1}")
        self.srd(RWA, sW1, 576 * 9216); self.srd(RWB, sW3, 576 * 9216)
        A(f"v_lshrrev_b32 v{vT}, 3, v{vLANE}\nv_mul_u32_u24 v{vT}, 9216, v{vT}\nv_and_b32 v{vT+1}, 7, v{vLANE}\nv_lshl_add_u32 v{vU+1}, v{vT+1}, 4, v{vT}")
        A(f"s_mul_i32 s{sC}, s{sWAVE}, {8*9216}\ns_lshl_b32 s{sD}, s{sI0}, 7\ns_add_u32 s{sC}, s{sC}, s{sD}")
        A(f"s_lshl_b32 s{sE}, s{sWAVE}, 10")
        A(f"s_lshl_b32 s{sD}, s{sWAVE}, 5\nv_add_u32 v{vU+2}, s{sD}, v{vQA}\nv_add_u32 v{vU+3}, {L_R2}, v{vU+2}")
        A("s_barrier")
        G = [(vU + 1, RWA, (sC, 32 * 9216 * j), L_R1 + 4096 * j) for j in range(18)]
        U = [(vU + 1, RWB, (sC, 32 * 9216 * j), L_R2 + 4096 * j) for j in range(18)]
        WD = self.c["WD"]; st = [9]
        def offs(): return [4096 * (i // 2) + 512 * (i % 2) for i in range(36)]
        def rd(areg, va, vb):
            o = offs(); out = []
            for i in range(36):
                if o[i] < 65536 - 4096: out.append(f"ds_read_b64_tr_b16 {ar(areg+2*i,2)}, v{va} offset:{o[i]}")
                else: out.append(f"ds_read_b64_tr_b16 {ar(areg+2*i,2)}, v{vb} offset:{o[i]-32768}")
            return out
        A(f"v_add_u32 v{vU+20}, 32768, v{vU+2}\nv_add_u32 v{vU+21}, 32768, v{vU+3}")
        self.dma_stream(G + U[:WD], st)
        A(f"s_waitcnt vmcnt({WD})\ns_barrier"); st[0] = min(st[0], WD)
        self.dma_stream(U[WD:], st, self.spread(rd(0, vU + 2, vU + 20), 18 - WD))
        A("s_waitcnt lgkmcnt(0)\ns_barrier")
        self.srd(RWA, sW2, 4608 * 1152)
        A(f"s_mul_i32 s{sC}, s{sI0}, {64*1152}\ns_lshl_b32 s{sD}, s{sWAVE}, 10\ns_add_u32 s{sC}, s{sC}, s{sD}")
        W2 = [(vVOFF, RWA, (sC, 4096 * j), L_R1 + 4096 * j) for j in range(18)]
        self.dma_stream(W2[:WD], st)
        A(f"s_waitcnt vmcnt({WD})\ns_barrier"); st[0] = min(st[0], WD)
        self.dma_stream(W2[WD:], st, self.spread(rd(72, vU + 3, vU + 21), 18 - WD))
        self.q_issue()
        self.tr_base(vU + 1, 1152)
        A(f"s_mul_i32 s{sD}, s{sWAVE}, 288\nv_add_u32 v{vU+1}, s{sD}, v{vU+1}")
        A("s_waitcnt vmcnt(12)\ns_barrier")
        for j in range(9):
            for s in range(2):
                for hh in range(2):
                    A(f"ds_read_b64_tr_b16 {ar(144+8*j+4*s+2*hh,2)}, v{vU+1} offset:{L_R1 + 36864*s + 4608*hh + 32*j}")
    def q_finish(self):
        A = self.A
        again, done = self.lab("qa"), self.lab("qd")
        A("s_waitcnt vmcnt(0)\ns_branch L_qchk\nL_qagain:")
        self.q_issue(with_k=False)
        A("s_waitcnt vmcnt(0)\nL_qchk:")
        R = list(range(vU + 4, vU + 20))
        A(f"v_and_b32 v{vT+2}, 15, v{vTAG}")
        self.check(R, 15, vT, vT + 2)
        self.retry("L_qagain", done)
        A.label(done)
        for i in range(8): A(f"v_add_f32 v{R[i]}, v{R[i]}, v{R[i+8]}")
        for i in range(8): A(f"v_add_f32_dpp v{R[i+8]}, v{R[i]}, v{R[i]} row_ror:8 row_mask:0xf bank_mask:0xf")
        for i in range(4): A(f"v_cvt_pk_bf16_f32 v{R[i]}, v{R[8+2*i]}, v{R[9+2*i]}")
        A(f"v_and_b32 v{vT}, 8, v{vLANE}\nv_cmp_eq_u32 vcc, 0, v{vT}")
        for i in range(4): A(f"v_cndmask_b32 v{vBQ+i}, 0, v{R[i]}, vcc")
        for i in range(4): A(f"v_sub_u32 v{vBQ+4+i}, v{R[i]}, v{vBQ+i}")
        for i in range(4): A(f"v_mov_b32 v{vACC+i}, 0")
        A(f"v_mov_b32 v{vM}, 0xff61b1e6\nv_mov_b32 v{vL}, 0\ns_waitcnt lgkmcnt(0)")
        self.stamp(2)
        if self.c["dbg"]: A("s_memrealtime s[92:93]")
        if self.c["tilelog"]: A(f"s_mov_b32 s18, 0\nv_mov_b32 v{vLOG}, 0")
        self.tlog()

    def extract(self, t):
        d = vDK + 4 * (t & 1); s = vS + t
        o = [f"v_mov_b32_dpp v{s}, v{d} quad_perm:[0,0,0,0] row_mask:0xf bank_mask:0xf"]
        for r in range(1, 4): o.append(f"v_add_f32_dpp v{s}, v{d+r}, v{s} quad_perm:[{r},{r},{r},{r}] row_mask:0xf bank_mask:0xf")
        return o
    def roundp(self, t):
        a, b, x = vS + t, vS + t + 1, vT
        if not self.c["round_scores"]:
            return [f"v_mul_f32 v{a}, s{sSCALE}, v{a}", f"v_mul_f32 v{b}, s{sSCALE}, v{b}"]
        return [f"v_cvt_pk_bf16_f32 v{x}, v{a}, v{b}", f"v_lshlrev_b32 v{a}, 16, v{x}", f"v_and_b32 v{b}, s{sHI}, v{x}",
                f"v_mul_f32 v{a}, s{sSCALE}, v{a}", f"v_mul_f32 v{b}, s{sSCALE}, v{b}",
                f"v_cvt_pk_bf16_f32 v{x}, v{a}, v{b}", f"v_lshlrev_b32 v{a}, 16, v{x}", f"v_and_b32 v{b}, s{sHI}, v{x}"]
    def maxp(self, t):
        return [f"v_max3_f32 v{vMX}, v{vM if t == 0 else vMX}, v{vS+t}, v{vS+t+1}"]
    def pexp(self, t):
        s = vS + t
        return [f"v_fma_f32 v{s}, v{s}, s{sLOG2E}, v{vMC}", f"v_exp_f32 v{s}, v{s}", f"v_add_f32 v{vL}, v{vL}, v{s}", f"v_cvt_pk_bf16_f32 v{s}, v{s}, v{s}"]
    def bprep(self, n):
        p = vS + (n >> 1); b = vBP + 4 * (n & 1); o = []
        for r in range(4):
            if (r >> 1) == (n & 1): o.append(f"v_and_b32 v{b+r}, v{p}, v{vMASK+r}")
            else: o.append(f"v_and_b32_dpp v{b+r}, v{p}, v{vMASK+r} row_ror:8 row_mask:0xf bank_mask:0xf")
        return o
    def tile(self, NK, D, issue, first=False, part="both"):
        A0 = self.A; NT = NK // 2; nc = self.c["nocomp"]
        def A(text):
            for x in text.split("\n"):
                if nc >= 1 and x.startswith("v_") and not x.startswith("v_mfma"): continue
                if nc >= 2 and x.startswith("v_mfma"): continue
                A0(x)
        def emit(l):
            for x in l: A(x)
        if part in ("both", "k"):
            for n in range(NK):
                if not first: A(f"s_waitcnt vmcnt({D-1})")
                d = vDK + 4 * ((n >> 1) & 1)
                A(f"v_mfma_f32_16x16x32_bf16 {vr(d)}, {vr(vRING+4*(n%16))}, {vr(vBQ+4*(n&1))}, {'0' if n % 2 == 0 else vr(d)}")
                if not (first and n + D < NK): issue(n + D)
                if n >= 3 and n % 2 == 1: emit(self.extract((n - 3) // 2))
                if n >= 6 and n % 4 == 2: emit(self.roundp((n - 6) // 2)); emit(self.maxp((n - 6) // 2))
        if part in ("both", "v"):
            emit(self.extract(NT - 1)); emit(self.roundp(NT - 2)); emit(self.maxp(NT - 2))
            if not nc: self.allred("v_max_f32", vMX, vT, ["row_ror:8", "p16", "p32"])
            A(f"v_sub_f32 v{vALPHA}, v{vM}, v{vMX}\nv_mul_f32 v{vMC}, s{sLOG2E}, v{vMX}\nv_mul_f32 v{vALPHA}, s{sLOG2E}, v{vALPHA}\nv_sub_f32 v{vMC}, 0, v{vMC}")
            A(f"v_exp_f32 v{vALPHA}, v{vALPHA}\nv_mov_b32 v{vM}, v{vMX}\nv_mul_f32 v{vL}, v{vL}, v{vALPHA}")
            emit(self.pexp(0))
            for r in range(4): A(f"v_mul_f32 v{vACC+r}, v{vACC+r}, v{vALPHA}")
            emit(self.bprep(0))
            for n in range(NK):
                A(f"s_waitcnt vmcnt({D-1})")
                A(f"v_mfma_f32_16x16x32_bf16 {vr(vACC)}, {vr(vRING+4*((NK+n)%16))}, {vr(vBP+4*(n&1))}, {vr(vACC)}")
                issue(NK + n + D)
                if n % 2 == 0 and n // 2 + 1 < NT: emit(self.pexp(n // 2 + 1))
                if n + 1 < NK: emit(self.bprep(n + 1))
                for z in range(self.c["pad"]): A(f"v_mov_b32 v{61 + (z & 1)}, v{vLANE}")
    def ld(self, slot, voff, srd, so, imm):
        pol = self.c["kpol"] if srd == RK else self.c["vpol"] if srd == RV else "nt"
        self.A(f"buffer_load_dwordx4 {vr(vRING+4*slot)}, v{voff}, {sr(srd)}, s{so} offen offset:{imm} {pol}")
    def stream(self):
        A = self.A; D, DS = self.c["D"], self.c["DS"]
        assert 4 <= D <= 8 and D <= DS <= 8
        grp = [None]
        def big_issue(m):
            if m < 32:
                j = m % 16; voff, srd = (vKOFF, RK) if m < 16 else (vVOFF, RV)
                if j >= 4 and grp[0] != j // 4:
                    A(f"s_add_u32 s{sTMP}, s{sCUR}, {16384*(j//4)}"); grp[0] = j // 4
                self.ld(m % 16, voff, srd, sCUR if j < 4 else sTMP, 1024 * (j % 4))
            else:
                j = m - 32
                if j < 4: self.ld(j, vKOFF, RK, sNXT, 1024 * j)
                else: self.ld(j, vDYN, RDYN, sDSO, 1024 * (j % 4))
        def top():
            A(f"s_add_u32 s{sNXT}, s{sCUR}, 65536\ns_add_u32 s{sDSO}, s{sCUR}, {65536+16384}")
            A(f"s_cmp_gt_u32 s{sNB}, 1\ns_cselect_b64 s[{sM0}:{sM1}], -1, 0\ns_cselect_b32 s{RDYN}, s{RK}, s{RV}\ns_cselect_b32 s{RDYN+1}, s{RK+1}, s{RV+1}\ns_cselect_b32 s{sDSO}, s{sDSO}, s{sNXT}")
            A(f"v_cndmask_b32 v{vDYN}, v{vVOFF}, v{vKOFF}, s[{sM0}:{sM1}]")
            A(f"s_add_u32 s{sA}, s{sNB}, s{sNS}\ns_cmp_gt_u32 s{sA}, 1\ns_cselect_b32 s{sNXT}, s{sNXT}, {OOB:#x}\ns_cselect_b32 s{sDSO}, s{sDSO}, {OOB:#x}")
        A(f"s_mov_b32 s{RDYN+2}, {1<<23}\ns_mov_b32 s{RDYN+3}, 0x20000")
        top()
        self.tile(16, D, big_issue, first=True, part="k")
        at_mid = grp[0]; grp[0] = None
        A("s_branch L_mid\n.p2align 6\nL_big:")
        self.tile(16, D, big_issue, part="k")
        assert at_mid == grp[0] or D <= 4
        A("L_mid:")
        self.tile(16, D, big_issue, part="v")
        self.tlog()
        A(f"s_mov_b32 s{sCUR}, s{sNXT}\ns_sub_u32 s{sNB}, s{sNB}, 1\ns_cmp_eq_u32 s{sNB}, 0\ns_cbranch_scc1 L_small_entry")
        top()
        A("s_branch L_big\nL_small_entry:")
        self.stamp(8)
        A(f"s_cmp_eq_u32 s{sNS}, 0\ns_cbranch_scc1 L_stream_done")
        for j in range(D, DS): self.ld(j, vVOFF, RV, sCUR, 1024 * (j % 4))
        def small_issue(m):
            so = sCUR if m < 8 else sNXT; j = m % 8
            if j < 4: self.ld(j, vKOFF, RK, so, 1024 * j)
            else: self.ld(j, vVOFF, RV, so, 1024 * (j - 4))
        if not self.c["dyn"]:
            A("L_small:")
            A(f"s_add_u32 s{sNXT}, s{sCUR}, 16384\ns_cmp_gt_u32 s{sNS}, 1\ns_cselect_b32 s{sNXT}, s{sNXT}, {OOB:#x}")
            self.tile_small(DS, small_issue)
            A(f"s_mov_b32 s{sCUR}, s{sNXT}\ns_sub_u32 s{sNS}, s{sNS}, 1\ns_cmp_lg_u32 s{sNS}, 0\ns_cbranch_scc1 L_small")
        else:
            base = 4 * self.c["NB"] + 3
            ca, cb, cc = self.c["chunks"]
            assert base + 4 * ca + 2 * cb + cc == 64
            vMB = vBP
            sWR, sPEND = sT0, sNB
            A(f"s_mov_b32 s{sMBI}, {L_MB+4}\ns_mov_b32 s{sWR}, {L_MB+12}\ns_mov_b32 s{sPEND}, 0\ns_lshl_b32 s{sB}, s{sWAVE}, 12\nv_min_u32 v{vDYN}, 3, v{vLANE}")
            A(".p2align 6\nL_small:")
            A(f"v_mov_b32 v{vMB}, s{sMBI}\ns_cmp_lg_u32 s{sWAVE}, 0\ns_cbranch_scc1 L_mb_read")
            A(f"s_cmp_lg_u32 s{sPEND}, 1\ns_cbranch_scc1 L_mb_idle")
            A("s_waitcnt lgkmcnt(0)")
            if self.c["fake"]:
                A(f"s_lshl_b32 s{sTK}, s{sEPO+0}, 0" if False else f"s_lshl_b32 s{sTK}, s{sFK}, 3\ns_add_u32 s{sTK}, s{sTK}, s{sSPLIT}\ns_add_u32 s{sFK}, s{sFK}, 1")
            A(f"s_lshr_b32 s{sC}, s{sTK}, 3\ns_add_u32 s{sA}, s{sC}, {base + 3*ca + cb}\ns_mov_b32 s{sD}, 1")
            A(f"s_lshl_b32 s{sE}, s{sC}, 1\ns_add_u32 s{sE}, s{sE}, {base + 2*ca}\ns_cmp_lt_u32 s{sC}, {ca+cb}\ns_cselect_b32 s{sA}, s{sE}, s{sA}\ns_cselect_b32 s{sD}, 2, s{sD}")
            A(f"s_lshl_b32 s{sE}, s{sC}, 2\ns_add_u32 s{sE}, s{sE}, {base}\ns_cmp_lt_u32 s{sC}, {ca}\ns_cselect_b32 s{sA}, s{sE}, s{sA}\ns_cselect_b32 s{sD}, 4, s{sD}")
            A(f"s_and_b32 s{sE}, s{sTK}, 7\ns_lshl_b32 s{sE}, s{sE}, 6\ns_add_u32 s{sA}, s{sA}, s{sE}")
            A(f"s_cmp_lt_u32 s{sC}, {ca+cb+cc}\ns_cselect_b32 s{sA}, s{sA}, {NULL_TILE:#x}\ns_cselect_b32 s{sPEND}, 0, 2")
            A(f"v_add_u32 v{vMB+2}, s{sA}, v{vDYN}\nv_cmp_gt_u32 vcc, s{sD}, v{vDYN}\nv_lshl_add_u32 v{vMB+3}, v{vDYN}, 2, s{sWR}\nv_cndmask_b32 v{vMB+2}, -1, v{vMB+2}, vcc")
            A(f"s_lshl_b32 s{sD}, s{sD}, 2\ns_add_u32 s{sWR}, s{sWR}, s{sD}\nds_write_b32 v{vMB+3}, v{vMB+2}")
            A(f"L_mb_idle:\nds_read_b32 v{vMB+1}, v{vMB}\ns_add_u32 s{sA}, s{sMBI}, 8\ns_cmp_gt_u32 s{sWR}, s{sA}\ns_cbranch_scc1 L_mb_wait\ns_cmp_lg_u32 s{sPEND}, 0\ns_cbranch_scc1 L_mb_wait")
            A(f"s_waitcnt lgkmcnt(0)\ns_mov_b32 s{sTK}, 1\ns_mov_b32 s{sPEND}, 1")
            if self.c["fake"] != 2: A(f"s_atomic_add s{sTK}, s[{sCNT}:{sCNT+1}], 0 glc")
            A("s_branch L_mb_got")
            A(f"L_mb_read:\nds_read_b32 v{vMB+1}, v{vMB}")
            A(f"L_mb_wait:\ns_waitcnt lgkmcnt(0)\nL_mb_got:\nv_readfirstlane_b32 s{sNS}, v{vMB+1}\ns_cmp_lg_u32 s{sNS}, -1\ns_cbranch_scc1 L_mb_ok")
            A(f"s_sub_u32 s{sSPIN}, s{sSPIN}, 1\ns_cmp_lg_u32 s{sSPIN}, 0\ns_cbranch_scc1 L_mb_read\ns_mov_b32 s{sNS}, {NULL_TILE:#x}\ns_mov_b32 s{sSPIN}, 1")
            A(f"L_mb_ok:\ns_lshl_b32 s{sNXT}, s{sNS}, 14\ns_add_u32 s{sNXT}, s{sNXT}, s{sB}\ns_add_u32 s{sMBI}, s{sMBI}, 4")
            self.tile_small(DS, small_issue)
            self.tlog()
            A(f"s_mov_b32 s{sCUR}, s{sNXT}\ns_cmp_lt_u32 s{sNS}, 512\ns_cbranch_scc1 L_small")
        A("L_stream_done:")
    def tile_small(self, D, issue):
        A = self.A
        self.tile(4, D, issue)

    def publish_partial(self):
        A = self.A
        if self.c["dbg"]: A("s_memrealtime s[90:91]")
        self.stamp(3)
        self.allred("v_add_f32", vL, vT, ["row_ror:8", "p16", "p32"])
        A(f"s_lshl_b32 s{sA}, s{sWAVE}, 10\ns_add_u32 s{sA}, s{sA}, {L_OW}\nv_add_u32 v{vU}, s{sA}, v{vVOFF}")
        A(f"s_lshl_b32 s{sA}, s{sWAVE}, 9\ns_add_u32 s{sA}, s{sA}, {L_MLW}\nv_lshl_add_u32 v{vU+1}, v{vLANE}, 3, s{sA}")
        A(f"ds_write_b128 v{vU}, {vr(vACC)}\nds_write_b64 v{vU+1}, {vr(vM,2)}")
        A("s_waitcnt vmcnt(0) lgkmcnt(0)\ns_barrier")
        self.stamp(9)
        A(f"s_cmp_lg_u32 s{sWAVE}, 0\ns_cbranch_scc1 L_dispatch")
        O = vU + 4; ML = vU + 20; F = vU + 28; R = vU + 32; G = vU + 36
        for w in range(4): A(f"ds_read_b64 {vr(ML+2*w,2)}, v{vU+1} offset:{512*w}")
        for w in range(4): A(f"ds_read_b128 {vr(O+4*w)}, v{vU} offset:{1024*w}")
        A(f"v_bfe_u32 v{vT}, v{vLANE}, 2, 1\nv_lshlrev_b32 v{vT+1}, 9, v{vT}\nv_lshl_add_u32 v{vT+1}, v{vG}, 7, v{vT+1}\nv_bfe_u32 v{vT+2}, v{vLANE}, 3, 1\nv_lshl_add_u32 v{vT+1}, v{vT+2}, 6, v{vT+1}")
        A(f"v_and_b32 v{vT+2}, 3, v{vLANE}\nv_lshl_add_u32 v{vU+2}, v{vT+2}, 4, v{vT+1}")
        A(f"v_lshlrev_b32 v{vT}, 7, v{vT}\nv_and_b32 v{vT+1}, 0x3b, v{vLANE}\nv_cmp_eq_u32 vcc, 0, v{vT+1}\nv_mov_b32 v{vT+2}, {OOB:#x}\nv_cndmask_b32 v{vU+3}, v{vT+2}, v{vT}, vcc")
        A(f"s_lshl_b32 s{sA}, s2, 10\ns_add_u32 s{sA}, s{sA}, {WS_OP}\ns_lshl_b32 s{sB}, s{sGRP}, 8\ns_lshl_b32 s{sC}, s{sSPLIT}, 4\ns_add_u32 s{sB}, s{sB}, s{sC}\ns_add_u32 s{sB}, s{sB}, {WS_ML}")
        A("s_waitcnt lgkmcnt(4)")
        A(f"v_max3_f32 v{G}, v{ML}, v{ML+2}, v{ML+4}\nv_max_f32 v{G}, v{G}, v{ML+6}")
        for w in range(4): A(f"v_sub_f32 v{F+w}, v{ML+2*w}, v{G}")
        for w in range(4): A(f"v_mul_f32 v{F+w}, s{sLOG2E}, v{F+w}")
        for w in range(4): A(f"v_exp_f32 v{F+w}, v{F+w}")
        A(f"v_mul_f32 v{G+1}, v{F}, v{ML+1}")
        for w in range(1, 4): A(f"v_fmac_f32 v{G+1}, v{F+w}, v{ML+2*w+1}")
        A("s_waitcnt lgkmcnt(0)")
        for r in range(4): A(f"v_mul_f32 v{R+r}, v{F}, v{O+r}")
        for w in range(1, 4):
            for r in range(4): A(f"v_fmac_f32 v{R+r}, v{F+w}, v{O+4*w+r}")
        self.tagw(range(R, R + 4), f"s{sFF}")
        A(f"buffer_store_dwordx4 {vr(R)}, v{vU+2}, {sr(RWS)}, s{sA} offen sc1")
        self.tagw([G, G + 1], f"s{sFF}")
        A(f"v_mov_b32 v{G+2}, v{G}\nv_mov_b32 v{G+3}, v{G+1}")
        A(f"buffer_store_dwordx4 {vr(G)}, v{vU+3}, {sr(RWS)}, s{sB} offen sc1")
        A("L_dispatch:")
        self.stamp(4)
        A(f"s_cmp_eq_u32 s{sROLE}, {ROLE_FFN}\ns_cbranch_scc1 L_tail_ffn\ns_cmp_eq_u32 s{sROLE}, {ROLE_PLAIN}\ns_cbranch_scc1 L_finish")
    def tail_o(self):
        A = self.A
        O = vU + 8; ML = vU + 40; X = vU + 48; Dq = vU + 44
        A(f"v_lshrrev_b32 v{vT}, 5, v{vLANE}\nv_and_b32 v{vT+1}, 31, v{vLANE}\nv_lshlrev_b32 v{vT+2}, 4, v{vT+1}\nv_lshl_add_u32 v{vU}, v{vT}, 17, v{vT+2}")
        A(f"v_and_b32 v{vT+2}, 7, v{vLANE}\nv_lshlrev_b32 v{vT+3}, 4, v{vT+2}\nv_lshl_add_u32 v{vU+1}, v{vT}, 12, v{vT+3}")
        A(f"v_mul_u32_u24 v{vT}, {XO_STRIDE}, v{vT}\nv_lshrrev_b32 v{vT+1}, 3, v{vT+1}\nv_lshl_add_u32 v{vT}, v{vT+1}, 6, v{vT}\nv_lshl_add_u32 v{vT}, v{vT+2}, 1, v{vT}")
        A(f"s_lshl_b32 s{sA}, s{sWAVE}, 8\ns_add_u32 s{sA}, s{sA}, {L_XO}\nv_add_u32 v{vU+2}, s{sA}, v{vT}")
        A(f"v_and_b32 v{vT}, 1, v{vLANE}\nv_mul_u32_u24 v{vT}, {XO_STRIDE}, v{vT}\nv_lshl_add_u32 v{vT}, v{vG}, 4, v{vT}\nv_add_u32 v{vU+3}, {L_XO}, v{vT}")
        A(f"v_and_b32 v{vT}, 15, v{vLANE}\nv_mul_u32_u24 v{vT+1}, 2304, v{vT}\nv_lshl_add_u32 v{vT+1}, v{vG}, 4, v{vT+1}\nv_cmp_gt_u32 vcc, 2, v{vT}\nv_mov_b32 v{vT+2}, {OOB:#x}\nv_cndmask_b32 v{vU+4}, v{vT+2}, v{vT+1}, vcc")
        A(f"s_lshl_b32 s{sA}, s{sI0}, 1\ns_lshr_b32 s{sB}, s{sWAVE}, 1\ns_add_u32 s{sA}, s{sA}, s{sB}\ns_and_b32 s{sB}, s{sWAVE}, 1")
        A(f"s_lshl_b32 s{sC}, s{sA}, 13\ns_lshl_b32 s{sD}, s{sB}, 9\ns_add_u32 s{sC}, s{sC}, s{sD}\ns_add_u32 s{sC}, s{sC}, {WS_OP}\ns_add_u32 s{sD}, s{sC}, 4096")
        A(f"s_lshl_b32 s{sA}, s{sA}, 8\ns_lshl_b32 s{sB}, s{sB}, 7\ns_add_u32 s{sA}, s{sA}, s{sB}\ns_add_u32 s{sA}, s{sA}, {WS_ML}")
        A(f"s_mul_i32 s{sB}, s{sI0}, 4608\ns_lshl_b32 s{sE}, s{sI1}, 8\ns_add_u32 s{sB}, s{sB}, s{sE}\ns_lshl_b32 s{sE}, s{sWAVE}, 6\ns_add_u32 s{sB}, s{sB}, s{sE}\ns_add_u32 s{sB}, s{sB}, {WS_AP}")
        done = self.lab("od")
        A("L_oagain:")
        A(f"buffer_load_dwordx4 {vr(ML)}, v{vU+1}, {sr(RWS)}, s{sA} offen sc1")
        for s in range(8): A(f"buffer_load_dwordx4 {vr(O+4*s)}, v{vU}, {sr(RWS)}, s{sC if s < 4 else sD} offen offset:{1024*(s%4)} sc1")
        A("s_waitcnt vmcnt(0)")
        self.check(list(range(O, O + 36)), f"s{sFF}", vT)
        self.retry("L_oagain", done)
        A.label(done)
        self.stamp(5)
        Mx, Wt, Ls = vT + 2, vT + 3, vT + 4
        A(f"v_mov_b32 v{Mx}, v{ML}")
        self.allred("v_max_f32", Mx, vT, [self.Q1, self.Q2, self.HM])
        A(f"v_sub_f32 v{Wt}, v{ML}, v{Mx}\nv_mul_f32 v{Wt}, s{sLOG2E}, v{Wt}\nv_exp_f32 v{Wt}, v{Wt}\nv_mul_f32 v{Ls}, v{Wt}, v{ML+1}")
        self.allred("v_add_f32", Ls, vT, [self.Q1, self.Q2, self.HM])
        A(f"v_rcp_f32 v{Ls}, v{Ls}\nv_mul_f32 v{Wt}, v{Wt}, v{Ls}")
        for r in range(4): A(f"v_mul_f32_dpp v{Dq+r}, v{Wt}, v{O+r} row_newbcast:0 row_mask:0xf bank_mask:0xf")
        for s in range(1, 8):
            for r in range(4): A(f"v_fmac_f32_dpp v{Dq+r}, v{Wt}, v{O+4*s+r} row_newbcast:{s} row_mask:0xf bank_mask:0xf")
        A(f"v_cvt_pk_bf16_f32 v{Dq}, v{Dq}, v{Dq+1}\nv_cvt_pk_bf16_f32 v{Dq+2}, v{Dq+2}, v{Dq+3}")
        A(f"ds_write_b16 v{vU+2}, v{Dq}\nds_write_b16_d16_hi v{vU+2}, v{Dq} offset:16\nds_write_b16 v{vU+2}, v{Dq+2} offset:32\nds_write_b16_d16_hi v{vU+2}, v{Dq+2} offset:48")
        A("s_waitcnt lgkmcnt(0)\ns_barrier")
        for s in range(16): A(f"ds_read_b128 {vr(X+4*s)}, v{vU+3} offset:{64*s}")
        for s in range(16):
            if s == 0: A("s_waitcnt lgkmcnt(15)")
            else: A(f"s_waitcnt lgkmcnt({15-s})")
            A(f"v_mfma_f32_16x16x32_bf16 {vr(Dq)}, {ar(4*s)}, {vr(X+4*s)}, {'0' if s == 0 else vr(Dq)}")
        self.tagw(range(Dq, Dq + 4), f"s{sFF}")
        A(f"buffer_store_dwordx4 {vr(Dq)}, v{vU+4}, {sr(RWS)}, s{sB} offen sc1")
        self.stamp(6)
        A("s_branch L_finish")
    def tail_ffn(self):
        A = self.A
        A("L_tail_ffn:")
        P = vU + 16; XV = vU + 6; X = vU + 40; Dg = vU + 112; Du = vU + 116; Hh = vU + 28
        pr = lambda pg, i: P + 12 * pg + 4 * (i // 3) + i % 3
        A(f"v_and_b32 v{vT}, 1, v{vLANE}\nv_mul_u32_u24 v{vT+1}, 1152, v{vT}\nv_lshl_add_u32 v{vT+1}, v{vG}, 4, v{vT+1}\nv_add_u32 v{vU}, {L_XN}, v{vT+1}")
        A(f"v_lshlrev_b32 v{vT+1}, 7, v{vT}\nv_lshl_add_u32 v{vT+1}, v{vG}, 4, v{vT+1}\nv_add_u32 v{vU+1}, {L_ACT}, v{vT+1}")
        A(f"v_and_b32 v{vT}, 1, v{vG}\nv_lshlrev_b32 v{vT}, 7, v{vT}\nv_and_b32 v{vT+1}, 15, v{vLANE}\nv_lshl_add_u32 v{vT}, v{vT+1}, 1, v{vT}")
        A(f"s_lshl_b32 s{sA}, s{sWAVE}, 5\ns_add_u32 s{sA}, s{sA}, {L_ACT}\nv_add_u32 v{vU+2}, s{sA}, v{vT}")
        A(f"v_lshrrev_b32 v{vT}, 3, v{vLANE}\nv_mul_u32_u24 v{vT}, 4608, v{vT}\nv_and_b32 v{vT+1}, 7, v{vLANE}\nv_lshl_add_u32 v{vU+3}, v{vT+1}, 3, v{vT}")
        A(f"v_cmp_gt_u32 vcc, 16, v{vLANE}\nv_mov_b32 v{vT+2}, {OOB:#x}\nv_cndmask_b32 v{vU+4}, v{vT+2}, v{vU+3}, vcc")
        A(f"v_and_b32 v{vT}, 16, v{vLANE}\nv_cmp_ne_u32 s[{sM0}:{sM1}], 0, v{vT}")
        A(f"s_cmp_ge_u32 s{sWAVE}, 2\ns_cbranch_scc1 L_ffn_b1")
        self.srd(RX, sX, 2304)
        A(f"v_mul_u32_u24 v{vU+5}, 6, v{vLANE}\ns_mul_i32 s{sA}, s{sWAVE}, 1152")
        for t in range(3):
            for i in range(3): A(f"buffer_load_ushort v{XV+3*t+i}, v{vU+5}, {sr(RX)}, s{sA} offen offset:{384*t+2*i}")
        A(f"v_lshlrev_b32 v{vU+15}, 1, v{vU+5}\ns_mul_i32 s{sB}, s{sWAVE}, 2304\ns_add_u32 s{sB}, s{sB}, {WS_AP}")
        done = self.lab("fd")
        A("L_fagain:")
        for pg in range(8):
            A(f"s_add_u32 s{sC}, s{sB}, {4608*pg}")
            for t in range(3): A(f"buffer_load_dwordx3 {vr(pr(pg,3*t),3)}, v{vU+15}, {sr(RWS)}, s{sC} offen offset:{768*t} sc1")
        A("s_waitcnt vmcnt(0)")
        self.check([pr(pg, i) for pg in range(8) for i in range(9)], f"s{sFF}", vT)
        self.retry("L_fagain", done)
        A.label(done)
        self.stamp(5)
        for st in (4, 2, 1):
            for pg in range(st):
                for i in range(9): A(f"v_add_f32 v{pr(pg,i)}, v{pr(pg,i)}, v{pr(pg+st,i)}")
        vals = [pr(0, i) for i in range(9)]
        for i in range(0, 8, 2): self.rnd2(vals[i], vals[i+1], vals[i], vals[i+1], vT)
        self.rnd(vals[8], vals[8])
        for i in range(9): A(f"v_lshlrev_b32 v{XV+i}, 16, v{XV+i}\nv_add_f32 v{vals[i]}, v{XV+i}, v{vals[i]}")
        for i in range(0, 8, 2): self.rnd2(vals[i], vals[i+1], vals[i], vals[i+1], vT)
        self.rnd(vals[8], vals[8])
        for i in range(9): A(f"v_mov_b32 v{Hh+i}, v{vals[i]}")
        self.layernorm(vals, [self.Q1, self.Q2, self.HM, self.RM, "p16", "p32"], vT)
        A(f"s_add_u32 s{sA}, s{sA}, {L_XN}\nv_add_u32 v{vU+5}, s{sA}, v{vU+5}")
        for i in range(0, 8, 2):
            A(f"v_cvt_pk_bf16_f32 v{vals[i]}, v{vals[i]}, v{vals[i+1]}")
            A(f"ds_write_b16 v{vU+5}, v{vals[i]} offset:{384*(i//3)+2*(i%3)}\nds_write_b16_d16_hi v{vU+5}, v{vals[i]} offset:{384*((i+1)//3)+2*((i+1)%3)}")
        A(f"v_cvt_pk_bf16_f32 v{vals[8]}, v{vals[8]}, v{vals[8]}\nds_write_b16 v{vU+5}, v{vals[8]} offset:{768+4}")
        A(f"s_mul_i32 s{sA}, s{sWAVE}, 2304\ns_add_u32 s{sA}, s{sA}, {L_HB}\nv_add_u32 v{vU+15}, s{sA}, v{vU+15}")
        A("s_waitcnt lgkmcnt(0)\ns_barrier")
        for i in range(9): A(f"ds_write_b32 v{vU+15}, v{Hh+i} offset:{768*(i//3)+4*(i%3)}")
        A("s_branch L_ffn_b1d\nL_ffn_b1:\ns_barrier\nL_ffn_b1d:")
        for s in range(18):
            A(f"ds_read_b128 {vr(X+4*s)}, v{vU} offset:{64*s}")
            if s >= 12:
                k = s - 12
                A(f"s_waitcnt lgkmcnt(12)")
                A(f"v_mfma_f32_16x16x32_bf16 {vr(Dg)}, {vr(X+4*k)}, {ar(4*k)}, {'0' if k == 0 else vr(Dg)}")
                A(f"v_mfma_f32_16x16x32_bf16 {vr(Du)}, {vr(X+4*k)}, {ar(72+4*k)}, {'0' if k == 0 else vr(Du)}")
        for k in range(6, 18):
            A(f"s_waitcnt lgkmcnt({17-k})")
            A(f"v_mfma_f32_16x16x32_bf16 {vr(Dg)}, {vr(X+4*k)}, {ar(4*k)}, {vr(Dg)}")
            A(f"v_mfma_f32_16x16x32_bf16 {vr(Du)}, {vr(X+4*k)}, {ar(72+4*k)}, {vr(Du)}")
        a, b = vT, vT + 1
        A(f"v_cndmask_b32 v{a}, v{Dg}, v{Dg+1}, s[{sM0}:{sM1}]\nv_cndmask_b32 v{b}, v{Du}, v{Du+1}, s[{sM0}:{sM1}]")
        self.rnd2(a, b, a, b, vT + 2)
        A(f"v_mul_f32 v{vT+2}, s{sLOG2E}, v{a}\nv_sub_f32 v{vT+2}, 0, v{vT+2}\nv_exp_f32 v{vT+2}, v{vT+2}\nv_add_f32 v{vT+2}, 1.0, v{vT+2}\nv_rcp_f32 v{vT+2}, v{vT+2}\nv_mul_f32 v{a}, v{a}, v{vT+2}")
        self.rnd(a, a)
        A(f"v_mul_f32 v{a}, v{a}, v{b}\nv_cvt_pk_bf16_f32 v{a}, v{a}, v{a}\nds_write_b16 v{vU+2}, v{a}")
        A(f"s_mul_i32 s{sA}, s{sWAVE}, {18*4608}\ns_lshl_b32 s{sB}, s{sI0}, 6\ns_add_u32 s{sA}, s{sA}, s{sB}\ns_add_u32 s{sA}, s{sA}, {WS_RP}\ns_add_u32 s{sB}, s{sA}, {8*4608}\ns_add_u32 s{sC}, s{sA}, {16*4608}")
        A("s_waitcnt lgkmcnt(0)\ns_barrier")
        A(f"ds_read_b128 {vr(X)}, v{vU+1}\nds_read_b128 {vr(X+4)}, v{vU+1} offset:64")
        Dd = X + 8
        A("s_waitcnt lgkmcnt(1)")
        for j in range(9): A(f"v_mfma_f32_16x16x32_bf16 {vr(Dd+4*j)}, {vr(X)}, {ar(144+8*j)}, 0")
        A("s_waitcnt lgkmcnt(0)")
        for j in range(9): A(f"v_mfma_f32_16x16x32_bf16 {vr(Dd+4*j)}, {vr(X+4)}, {ar(144+8*j+4)}, {vr(Dd+4*j)}")
        for st, (vo, so) in enumerate(((vU + 3, sA), (vU + 3, sB), (vU + 4, sC))):
            d0 = Dd + 16 * st
            if st < 2:
                for j in range(1, 4):
                    for r in range(2): A(f"v_mov_b32_dpp v{d0+r}, v{d0+4*j+r} quad_perm:[0,1,2,3] row_mask:{1<<j:#x} bank_mask:0xf")
            self.tagw([d0, d0 + 1], f"s{sFF}")
            A(f"buffer_store_dwordx2 {vr(d0,2)}, v{vo}, {sr(RWS)}, s{so} offen sc1")
        self.stamp(6)
        A(f"s_cmp_lg_u32 s{sWAVE}, 0\ns_cbranch_scc1 L_finish")
        R = X
        self.srd(RWQ, sOUT, 2304)
        A(f"v_cmp_gt_u32 s[{sM0}:{sM1}], 32, v{vLANE}\nv_add_u32 v{vT}, 4096, v{vVOFF}\nv_mov_b32 v{vT+2}, {OOB:#x}\nv_cndmask_b32 v{vU+4}, v{vT+2}, v{vT}, s[{sM0}:{sM1}]")
        A(f"s_mul_i32 s{sA}, s{sI0}, 4608\ns_add_u32 s{sA}, s{sA}, {WS_RP}")
        A(f"v_and_b32 v{vT}, 1, v{vG}\nv_mul_u32_u24 v{vT}, 576, v{vT}\nv_lshrrev_b32 v{vT+1}, 1, v{vG}\nv_add_u32 v{vT}, v{vT}, v{vT+1}\nv_and_b32 v{vT+1}, 3, v{vLANE}\nv_lshl_add_u32 v{vT}, v{vT+1}, 1, v{vT}")
        A(f"s_lshl_b32 s{sB}, s{sI0}, 3\nv_add_u32 v{vT}, s{sB}, v{vT}\nv_lshlrev_b32 v{vU+2}, 2, v{vT}\nv_add_u32 v{vU+2}, {L_HB}, v{vU+2}\nds_read_b32 v{vU+5}, v{vU+2}")
        A(f"v_lshlrev_b32 v{vT}, 1, v{vT}\nv_and_b32 v{vT+1}, 12, v{vLANE}\nv_cmp_eq_u32 vcc, 0, v{vT+1}\nv_cndmask_b32 v{vU+3}, v{vT+2}, v{vT}, vcc")
        done = self.lab("rd")
        A("L_ragain:")
        for i in range(4): A(f"buffer_load_dwordx4 {vr(R+4*i)}, v{vVOFF}, {sr(RWS)}, s{sA} offen offset:{1024*i} sc1")
        A(f"buffer_load_dwordx4 {vr(R+16)}, v{vU+4}, {sr(RWS)}, s{sA} offen sc1")
        A("s_waitcnt vmcnt(0)")
        for i in range(4): A(f"v_cndmask_b32 v{R+16+i}, v{vTAG}, v{R+16+i}, s[{sM0}:{sM1}]")
        self.check(list(range(R, R + 20)), f"s{sFF}", vT)
        self.retry("L_ragain", done)
        A.label(done)
        self.stamp(7)
        for r in range(4): A(f"v_add_f32 v{R+r}, v{R+r}, v{R+4+r}\nv_add_f32 v{R+8+r}, v{R+8+r}, v{R+12+r}")
        for r in range(4): A(f"v_add_f32 v{R+r}, v{R+r}, v{R+16+r}")
        for r in range(4): A(f"v_add_f32 v{R+r}, v{R+r}, v{R+8+r}")
        A(f"v_permlane32_swap_b32 v{R}, v{R+2}\nv_permlane32_swap_b32 v{R+1}, v{R+3}\nv_add_f32 v{R}, v{R}, v{R+2}\nv_add_f32 v{R+1}, v{R+1}, v{R+3}")
        A(f"v_permlane16_swap_b32 v{R}, v{R+1}\nv_add_f32 v{R}, v{R}, v{R+1}")
        self.allred("v_add_f32", R, vT, ["row_ror:4", "row_ror:8"])
        self.rnd(R, R)
        A(f"s_waitcnt lgkmcnt(0)\nv_add_f32 v{R}, v{vU+5}, v{R}\nv_cvt_pk_bf16_f32 v{R}, v{R}, v{R}")
        A(f"buffer_store_short v{R}, v{vU+3}, {sr(RWQ)}, 0 offen")
        A(f"s_cmp_lg_u32 s{sI0}, 0\ns_cbranch_scc1 L_finish")
        if self.c["dbg"]:
            A("s_memtime s[16:17]\ns_memrealtime s[18:19]\ns_waitcnt lgkmcnt(0)\ns_sub_u32 s16, s16, s98\ns_sub_u32 s18, s18, s96\ns_sub_u32 s90, s90, s96\ns_sub_u32 s92, s92, s96")
            A(f"v_mov_b32 v{R+4}, s16\nv_mov_b32 v{R+5}, s18\nv_mov_b32 v{R+6}, s90\nv_mov_b32 v{R+7}, s92\nv_mov_b32 v{vT+3}, 0\ns_mov_b64 exec, 1\nglobal_store_dwordx4 v{vT+3}, {vr(R+4)}, s[100:101]\ns_mov_b64 exec, -1")
        A(f"v_mov_b32 v{vT+3}, {OOB:#x}\nv_cmp_eq_u32 vcc, 0, v{vLANE}\nv_cndmask_b32 v{vT}, v{vT+3}, v{vLANE}, vcc")
        A(f"s_add_u32 s{sA}, s{sEPO}, 1\nv_mov_b32 v{vT+1}, s{sA}\nbuffer_store_dword v{vT+1}, v{vT}, {sr(RWS)}, 0 offen offset:{WS_EPOCH} sc1")
    def finish(self):
        A = self.A
        A("L_finish:")
        if self.c["tilelog"]:
            A(f"s_lshl_b32 s7, s2, 2\ns_add_u32 s7, s7, s{sWAVE}\ns_lshl_b32 s7, s7, 8\ns_add_u32 s7, s7, {WS_LOG}\nv_lshlrev_b32 v{vT}, 2, v{vLANE}")
            A(f"buffer_store_dword v{vLOG}, v{vT}, {sr(RWS)}, s7 offen")
        if self.c["stamps"]:
            A("s_memrealtime s[16:17]\ns_getreg_b32 s18, hwreg(HW_REG_XCC_ID)\ns_waitcnt lgkmcnt(0)")
            B = vU + 100
            A(f"s_lshl_b32 s7, s2, 2\ns_add_u32 s7, s7, s{sWAVE}\ns_lshl_b32 s7, s7, 7\ns_add_u32 s7, s7, {WS_STAMP}")
            A(f"v_mov_b32 v{B}, 0")
            for i in range(8): A(f"v_writelane_b32 v{B}, s{STAMP_REGS[i]}, {i}")
            A(f"v_writelane_b32 v{B}, s16, 8\nv_writelane_b32 v{B}, s18, 9\nv_writelane_b32 v{B}, s{sROLE}, 10\nv_writelane_b32 v{B}, s{sSPIN}, 11")
            A(f"v_writelane_b32 v{B}, s{sMBI}, 12\nv_writelane_b32 v{B}, s{STAMP_REGS[8]}, 13\nv_writelane_b32 v{B}, s{STAMP_REGS[9]}, 14")
            A(f"v_lshlrev_b32 v{B+1}, 2, v{vLANE}\nv_cmp_gt_u32 vcc, 32, v{vLANE}\nv_mov_b32 v{B+2}, {OOB:#x}\nv_cndmask_b32 v{B+1}, v{B+2}, v{B+1}, vcc")
            A(f"buffer_store_dword v{B}, v{B+1}, {sr(RWS)}, s7 offen")
        A("L_end:\ns_endpgm")

    def build(self):
        A = self.A
        self.prologue()
        A(f"s_cmp_eq_u32 s{sROLE}, {ROLE_FFN}\ns_cbranch_scc1 L_stage_ffn\ns_cmp_eq_u32 s{sROLE}, {ROLE_O}\ns_cbranch_scc1 L_stage_o")
        self.q_issue()
        A("L_staged:")
        self.q_finish()
        self.stream()
        self.publish_partial()
        self.tail_o()
        self.tail_ffn()
        A("s_branch L_finish\nL_stage_o:")
        self.stage_o()
        A("s_branch L_staged\nL_stage_ffn:")
        self.stage_ffn()
        A("s_branch L_staged")
        self.finish()
        body = A.finalize()
        tab = make_table(self.c)
        head = open("cdna_kernels/" + NAME + ".s.ref").read().split("; Override launch")[0]
        out = head + f"; @launch grid=(256,1,1) block=(256,1,1) lds={LDS_BYTES}\n"
        out += f'.amdgcn_target "amdgcn-amd-amdhsa--gfx950"\n.text\n.globl {NAME}_kernel\n.p2align 8\n.type {NAME}_kernel,@function\n{NAME}_kernel:\n'
        out += body
        out += ".p2align 4\n.type L_table,@object\nL_table:\n" + "".join(f".long {a:#x}, {b:#x}\n" for a, b in tab) + ".size L_table, 2048\n"
        out += f""".section .rodata,"a"
.p2align 6
.amdhsa_kernel {NAME}_kernel
  .amdhsa_next_free_vgpr 472
  .amdhsa_next_free_sgpr 102
  .amdhsa_accum_offset 256
  .amdhsa_group_segment_fixed_size 0
  .amdhsa_kernarg_size 96
  .amdhsa_user_sgpr_count 2
  .amdhsa_user_sgpr_kernarg_segment_ptr 1
  .amdhsa_system_sgpr_workgroup_id_x 1
  .amdhsa_float_denorm_mode_32 3
.end_amdhsa_kernel
"""
        return out

def generate(**cfg): return Gen(cfg).build()
if __name__ == "__main__":
    cfg = json.loads(sys.argv[2]) if len(sys.argv) > 2 else {}
    open(sys.argv[1], "w").write(generate(**cfg))
```

```python
import sys, json, struct
from asmlib import Asm

NAME = "sequential_preLN__gqa_block_cached__glu_gated_swiglu__decode"
DEF = dict(D=6, DS=8, WD=8, stamps=False, round_scores=True, counts=None, spin=200000, sleep=0, pf2=False, xs={}, hint1=False, hint2=True, hint3=False, ackwait=2, overlap=True, stpol='sc1', ldpol='sc1', prefetch_code=True,
           nffn=(60, 60), no=(64, 64, 65), npl=(66, 66, 67), xffn=(60, 60, 59), xpl=(67, 67, 67, 66, 66),
           tilelog=False, kpol='nt', vpol='nt', dbg=False, pad=0, nocomp=0, dyn=True, NB=11, chunks=(3, 2, 1), cstride=256, fake=False)

WS_EPOCH = 0x0
WS_QP = 0x1000
WS_OP = 0x30000
OP_STRIDE = 1280
WS_F2 = 0x24000
WS_F3 = 0x28000
WS_AP = 0x80000
WS_RP = 0x90000
WS_CNT = 0xE4000
WS_STAMP = 0x100000
WS_LOG = 0x140000
WS_SIZE = 0x200000
OOB = 0x80000000
L_R1, L_R2 = 0, 73728
L_QST = L_R2
L_XN = 147456
L_OW = 150016
L_MLW = 154112
L_XO = 156160; XO_STRIDE = 1056
L_HB = 158272
L_ACT = 162880
L_MB = 163136
NULL_TILE = 0x20000
LDS_BYTES = 163840
ROLE_PLAIN, ROLE_O, ROLE_FFN = 0, 1, 2
LOG2E = 0x3fb8aa3b
SCALE = struct.unpack("<I", struct.pack("<f", 128 ** -0.5))[0]
INV576 = struct.unpack("<I", struct.pack("<f", 1.0 / 576))[0]
EPS = struct.unpack("<I", struct.pack("<f", 1e-5))[0]

def make_table(cfg):
    rows = []
    ffn_i = o_i = y = x = 0
    for g in range(32):
        roles = [ROLE_PLAIN] * 8
        if g % 4 == 3:
            f = [(3 * x + k) % 8 for k in range(3)]; o = []
            cf, co, cp = list(cfg["xffn"]), [], list(cfg["xpl"]); x += 1
        else:
            f = [(2 * y + k) % 8 for k in range(2)]
            o = [(2 * y + 2 + k) % 8 for k in range(3)]
            cf, co, cp = list(cfg["nffn"]), list(cfg["no"]), list(cfg["npl"]); y += 1
        for j in f: roles[j] = ROLE_FFN
        for j in o: roles[j] = ROLE_O
        start = 0
        for j in range(8):
            if roles[j] == ROLE_FFN: n = cf.pop(0); idx = ffn_i; ffn_i += 1
            elif roles[j] == ROLE_O: n = co.pop(0); idx = (o_i // 9) * 16 + o_i % 9; o_i += 1
            else: n = cp.pop(0); idx = 0
            if cfg["dyn"]: start, n = 64 * j, 4 * cfg["NB"] + 3
            assert n >= 8
            rows.append((start | ((n >> 2) << 10) | ((n & 3) << 16) | (roles[j] << 24), idx))
            start += n
        assert cfg['dyn'] or start == 512, (g, start)
    assert ffn_i == 72 and o_i == 72
    return rows

def vr(b, n=4): return f"v[{b}:{b+n-1}]" if n > 1 else f"v{b}"
def ar(b, n=4): return f"a[{b}:{b+n-1}]" if n > 1 else f"a{b}"
def sr(b, n=4): return f"s[{b}:{b+n-1}]"

sX, sK, sV, sWQ, sWO, sW1, sW3, sW2, sOUT, sWS = 4, 6, 8, 10, 12, 16, 18, 20, 22, 26
RK, RV, RWS, RWA, RWB, RX, RWQ, RDYN = 28, 32, 36, 40, 44, 48, 52, 84
sWAVE, sTAG, sT0, sT1 = 56, 57, 58, 59
sCUR, sNXT, sTMP, sNB, sNS = 60, 61, 62, 63, 64
sA, sB, sC, sD, sE = 65, 66, 67, 68, 69
sROLE, sI0, sI1, sSPIN = 70, 71, 72, 73
sM0, sM1 = 74, 75
sHI, sSCALE, sLOG2E, sFF = 76, 77, 78, 79
sGRP, sSPLIT, sPC0, sDSO = 80, 81, 82, 88
sEPO = 89
sOPA, sOPS, sNLOG2E, sAP = 19, 20, 21, 44
sTK, sMBI, sCNT, sFK = 3, 14, 24, 15
STAMP_REGS = [90, 92, 94, 96, 98, 100, 6, 8, 10, 12]
vLANE, vKOFF, vVOFF = 1, 2, 3
vMASK = 4; vBQ = 8; vDK = 16; vS = 24; vACC = 32
vM, vL, vALPHA, vMC, vMX = 36, 37, 38, 39, 40
vT = 41
vBP = 48; vTAG, vDYN, vG, vQA = 56, 57, 58, 59
vLOG = 60; vF1 = 63
vRING = 64
vU = 128
vC = 252

class Gen:
    def __init__(self, cfg):
        self.c = dict(DEF); self.c.update(cfg)
        self.A = Asm(); self.nlab = 0; self.nstamp = 0
    def lab(self, p): self.nlab += 1; return f"L_{p}_{self.nlab}"
    def xstamp(self, name):
        if name in self.c["xs"]: self.stamp(self.c["xs"][name], True)
    def stamp(self, i, force=False):
        if self.c["stamps"] and (force or i not in self.c["xs"].values()):
            r = STAMP_REGS[i]; self.A(f"s_memrealtime s[{r}:{r+1}]")
    def tlog(self):
        if not self.c["tilelog"]: return
        A = self.A; skip = self.lab("tl")
        A(f"s_cmp_lg_u32 s{sWAVE}, 1\ns_cbranch_scc1 {skip}\ns_memrealtime s[16:17]\ns_waitcnt lgkmcnt(0)\ns_mov_b32 m0, s18\nv_writelane_b32 v{vLOG}, s16, m0\ns_add_u32 s18, s18, 1\ns_min_u32 s18, s18, 63\n{skip}:")
    def srd(self, r, ptr, size, off=None):
        A = self.A
        if off is None: A(f"s_mov_b32 s{r}, s{ptr}\ns_mov_b32 s{r+1}, s{ptr+1}")
        else: A(f"s_add_u32 s{r}, s{ptr}, s{off}\ns_addc_u32 s{r+1}, s{ptr+1}, 0")
        A(f"s_mov_b32 s{r+2}, {size}\ns_mov_b32 s{r+3}, 0x20000")
    def rnd(self, d, s):
        self.A(f"v_cvt_pk_bf16_f32 v{d}, v{s}, v{s}\nv_and_b32 v{d}, s{sHI}, v{d}")
    def rnd2(self, da, db, a, b, t):
        self.A(f"v_cvt_pk_bf16_f32 v{t}, v{a}, v{b}\nv_lshlrev_b32 v{da}, 16, v{t}\nv_and_b32 v{db}, s{sHI}, v{t}")
    def allred(self, op, v, t, steps):
        A = self.A
        for s in steps:
            if s == "p16": A(f"v_mov_b32 v{t}, v{v}\nv_permlane16_swap_b32 v{v}, v{t}\n{op} v{v}, v{v}, v{t}")
            elif s == "p32": A(f"v_mov_b32 v{t}, v{v}\nv_permlane32_swap_b32 v{v}, v{t}\n{op} v{v}, v{v}, v{t}")
            else: A(f"{op}_dpp v{v}, v{v}, v{v} {s} row_mask:0xf bank_mask:0xf")
    Q1, Q2, HM, RM = "quad_perm:[1,0,3,2]", "quad_perm:[2,3,0,1]", "row_half_mirror", "row_mirror"
    def layernorm(self, vals, steps, t0):
        A = self.A; s, q, t, u = t0, t0 + 1, t0 + 2, t0 + 3
        A(f"v_add_f32 v{s}, v{vals[0]}, v{vals[1]}\nv_add_f32 v{q}, v{vals[2]}, v{vals[3]}")
        for i, v in enumerate(vals[4:]): A(f"v_add_f32 v{(s, q)[i & 1]}, v{(s, q)[i & 1]}, v{v}")
        A(f"v_add_f32 v{s}, v{s}, v{q}")
        self.allred("v_add_f32", s, t, steps)
        A(f"v_mul_f32 v{s}, {INV576:#x}, v{s}")
        for i, v in enumerate(vals):
            A(f"v_sub_f32 v{t}, v{v}, v{s}")
            if i < 2: A(f"v_mul_f32 v{(q, u)[i]}, v{t}, v{t}")
            else: A(f"v_fmac_f32 v{(q, u)[i & 1]}, v{t}, v{t}")
        A(f"v_add_f32 v{q}, v{q}, v{u}")
        self.allred("v_add_f32", q, t, steps)
        A(f"v_mul_f32 v{q}, {INV576:#x}, v{q}")
        self.rnd2(s, q, s, q, t)
        A(f"v_add_f32 v{q}, {EPS:#x}, v{q}"); self.rnd(q, q)
        A(f"v_sqrt_f32 v{q}, v{q}"); self.rnd(q, q)
        A(f"v_rcp_f32 v{q}, v{q}")
        for v in vals: A(f"v_sub_f32 v{v}, v{v}, v{s}")
        for i in range(0, len(vals) - 1, 2): self.rnd2(vals[i], vals[i+1], vals[i], vals[i+1], t)
        if len(vals) & 1: self.rnd(vals[-1], vals[-1])
        for v in vals: A(f"v_mul_f32 v{v}, v{v}, v{q}")
    def tagw(self, regs, mask):
        for r in regs: self.A(f"v_bfi_b32 v{r}, {mask}, v{vTAG}, v{r}")
    def check(self, regs, mask, t, tag=None, masked=None):
        A = self.A; tag = vTAG if tag is None else tag
        regs = list(regs)
        extra = list(masked[0]) if masked else []
        for r in regs + extra: A(f"v_xor_b32 v{r}, v{r}, v{tag}")
        def tree(rs, d):
            if len(rs) == 1: return rs[0]
            if len(rs) == 2: A(f"v_or_b32 v{d}, v{rs[0]}, v{rs[1]}"); rs = []
            else: A(f"v_or3_b32 v{d}, v{rs[0]}, v{rs[1]}, v{rs[2]}"); rs = rs[3:]
            while rs:
                if len(rs) >= 2: A(f"v_or3_b32 v{d}, v{d}, v{rs[0]}, v{rs[1]}"); rs = rs[2:]
                else: A(f"v_or_b32 v{d}, v{d}, v{rs[0]}"); rs = []
            return d
        r0 = tree(regs, t)
        if extra:
            r1 = tree(extra, t + 1)
            A(f"v_and_or_b32 v{t}, v{r1}, v{masked[1]}, v{r0}"); r0 = t
        A(f"v_and_b32 v{t}, {mask}, v{r0}\nv_cmp_ne_u32 vcc, 0, v{t}")
    def retry(self, again, done):
        A = self.A
        A(f"s_cbranch_vccz {done}\ns_sub_u32 s{sSPIN}, s{sSPIN}, 1\ns_cmp_eq_u32 s{sSPIN}, 0\ns_cbranch_scc1 {done}")
        if self.c["sleep"]: A(f"s_sleep {self.c['sleep']}")
        A(f"s_branch {again}")
    def dma(self, voff, srd, soff, ldsaddr_sreg_plus, pol="nt"):
        base, imm = ldsaddr_sreg_plus
        self.A(f"s_add_u32 m0, s{base}, {imm}\nbuffer_load_dwordx4 v{voff}, {sr(srd)}, s{soff} offen {pol} lds")

    def prologue(self):
        A = self.A; c = self.c
        A(f"s_cmp_ge_u32 s2, 256\ns_cbranch_scc1 L_end")
        A("s_load_dwordx16 s[4:19], s[0:1], 0\ns_load_dwordx8 s[20:27], s[0:1], 64")
        A(f"s_getpc_b64 s[{sPC0}:{sPC0+1}]\nL_pc:")
        A(f"s_lshl_b32 s{sA}, s2, 3\ns_add_u32 s{sA}, s{sA}, L_table-L_pc")
        A(f"s_load_dwordx2 s[{sT0}:{sT1}], s[{sPC0}:{sPC0+1}], s{sA}")
        self.stamp(0)
        A(f"v_and_b32 v{vLANE}, 63, v0\nv_lshrrev_b32 v{vT}, 6, v0\nv_readfirstlane_b32 s{sWAVE}, v{vT}")
        A(f"s_mov_b32 s{sHI}, 0xffff0000\ns_mov_b32 s{sSCALE}, {SCALE:#x}\ns_mov_b32 s{sLOG2E}, {LOG2E:#x}\ns_mov_b32 s{sFF}, 0xff")
        A(f"s_mov_b32 s{sSPIN}, {c['spin']}\ns_lshr_b32 s{sGRP}, s2, 3\ns_and_b32 s{sSPLIT}, s2, 7")
        A(f"v_lshrrev_b32 v{vG}, 4, v{vLANE}\nv_lshlrev_b32 v{vVOFF}, 4, v{vLANE}")
        A(f"v_lshrrev_b32 v{vT}, 5, v{vLANE}\nv_mul_u32_u24 v{vT}, 1152, v{vT}\nv_and_b32 v{vT+1}, 31, v{vLANE}\nv_mad_u32_u24 v{vU}, v{vT+1}, 12, v{vT}")
        A(f"v_lshrrev_b32 v{vT}, 3, v{vLANE}\nv_and_b32 v{vT+1}, 7, v{vLANE}\nv_lshlrev_b32 v{vT+1}, 4, v{vT+1}\nv_lshl_add_u32 v{vU+1}, v{vT}, 13, v{vT+1}")
        A(f"v_bfe_u32 v{vT}, v{vLANE}, 2, 2\nv_lshlrev_b32 v{vT}, 8, v{vT}\nv_lshl_add_u32 v{vT}, v{vG}, 6, v{vT}\nv_and_b32 v{vT+1}, 3, v{vLANE}\nv_lshl_add_u32 v{vKOFF}, v{vT+1}, 4, v{vT}")
        A(f"s_and_b32 s{sI0}, s2, 63\ns_lshr_b32 s{sI1}, s2, 6")
        A(f"s_mul_i32 s{sB}, s{sI1}, 160\ns_cmp_eq_u32 s{sI1}, 3\ns_cselect_b32 s{sB}, 448, s{sB}")
        A(f"s_lshl_b32 s{sC}, s{sWAVE}, 3\ns_add_u32 s{sC}, s{sC}, s{sB}\ns_lshl_b32 s{sC}, s{sC}, 13\ns_lshl_b32 s{sD}, s{sI0}, 7\ns_add_u32 s{sC}, s{sC}, s{sD}")
        A(f"s_lshl_b32 s{sE}, s{sWAVE}, 10\ns_add_u32 s{sE}, s{sE}, {L_QST}")
        A(f"s_lshl_b32 s{sA}, s{sGRP}, 23")
        A("s_waitcnt lgkmcnt(0)")
        if c["dbg"]:
            A("s_mov_b32 s100, s24\ns_mov_b32 s101, s25\ns_memtime s[98:99]\ns_memrealtime s[96:97]")
        self.srd(RX, sX, 2304)
        self.srd(RWQ, sWQ, 576 * 8192)
        A(f"s_load_dword s{sEPO}, s[{sWS}:{sWS+1}], {WS_EPOCH}")
        for t in range(3): A(f"buffer_load_dwordx3 {vr(vU+4+4*t,3)}, v{vU}, {sr(RX)}, 0 offen offset:{384*t}")
        for j in range(5):
            if j == 4: A(f"s_cmp_lt_u32 s{sI1}, 2\ns_cselect_b32 s{sC}, s{sC}, {OOB:#x}")
            self.dma(vU + 1, RWQ, sC, (sE, 4096 * j))
            if j < 4: A(f"s_add_u32 s{sC}, s{sC}, {32*8192}")
        self.srd(RK, sK, 1 << 23, sA); self.srd(RV, sV, 1 << 23, sA); self.srd(RWS, sWS, WS_SIZE)
        if c["dyn"]:
            A(f"s_lshr_b32 s{sA}, s2, 2\ns_mul_i32 s{sA}, s{sA}, {c['cstride']}\ns_add_u32 s{sA}, s{sA}, {WS_CNT}")
            A(f"s_and_b32 s{sB}, s2, 0x83\ns_or_b32 s{sB}, s{sB}, s{sWAVE}\ns_cmp_eq_u32 s{sB}, 0\ns_cselect_b32 s{sA}, s{sA}, {OOB:#x}")
            A(f"v_mov_b32 v{vT}, 0\nv_cmp_eq_u32 vcc, 0, v{vLANE}\nv_mov_b32 v{vT+1}, {OOB>>1:#x}\nv_cndmask_b32 v{vT+1}, v{vT+1}, v{vT}, vcc")
            A(f"buffer_store_dword v{vT}, v{vT+1}, {sr(RWS)}, s{sA} offen sc1")
            A(f"s_mul_i32 s{sB}, s{sI1}, 160\ns_cmp_eq_u32 s{sI1}, 3\ns_cselect_b32 s{sB}, 448, s{sB}")
            A(f"s_mov_b32 s{sFK}, 0")
            A(f"s_mul_i32 s{sA}, s{sGRP}, {c['cstride']}\ns_add_u32 s{sA}, s{sA}, {WS_CNT}\ns_add_u32 s{sCNT}, s{sWS}, s{sA}\ns_addc_u32 s{sCNT+1}, s{sWS+1}, 0")
            A(f"s_lshl_b32 s{sA}, s{sSPLIT}, 6\ns_add_u32 s{sA}, s{sA}, {4*c['NB']}\nv_add_u32 v{vT}, s{sA}, v{vLANE}\nv_cmp_gt_u32 vcc, 3, v{vLANE}\nv_cndmask_b32 v{vT}, -1, v{vT}, vcc")
            A(f"v_lshlrev_b32 v{vT+1}, 2, v{vLANE}\nv_add_u32 v{vT+1}, {L_MB}, v{vT+1}\nv_mov_b32 v{vT+2}, -1\nds_write_b32 v{vT+1}, v{vT}\nds_write_b32 v{vT+1}, v{vT+2} offset:256\nds_write_b32 v{vT+1}, v{vT+2} offset:448")
        A(f"s_and_b32 s{sCUR}, s{sT0}, 0x3ff\ns_lshl_b32 s{sCUR}, s{sCUR}, 14\ns_lshl_b32 s{sA}, s{sWAVE}, 12\ns_add_u32 s{sCUR}, s{sCUR}, s{sA}")
        A(f"s_bfe_u32 s{sNB}, s{sT0}, 0x6000a\ns_bfe_u32 s{sNS}, s{sT0}, 0x80010\ns_lshr_b32 s{sROLE}, s{sT0}, 24")
        for n in range(8): self.kload_first(n)
        if c["prefetch_code"]:
            A(f"s_lshr_b32 s{sA}, s2, 3\ns_lshl_b32 s{sA}, s{sA}, 2\ns_add_u32 s{sA}, s{sA}, s{sWAVE}\ns_lshl_b32 s{sA}, s{sA}, 10")
            A(f"s_min_u32 s{sA}, s{sA}, L_table-L_pc-1024\nv_add_u32 v{vT}, s{sA}, v{vVOFF}")
            A(f"global_load_dwordx4 {vr(vU+116)}, v{vT}, s[{sPC0}:{sPC0+1}]")
        ny = 8 + (1 if c["prefetch_code"] else 0)
        A(f"v_bfe_u32 v{vT}, v{vLANE}, 3, 1\nv_bfe_u32 v{vT+1}, v{vLANE}, 1, 1\nv_lshl_add_u32 v{vT}, v{vT}, 1, v{vT+1}")
        A(f"v_and_b32 v{vT+1}, 1, v{vLANE}\nv_cmp_eq_u32 vcc, 1, v{vT+1}\nv_mov_b32 v{vT+2}, 0xffff\nv_mov_b32 v{vT+3}, s{sHI}\nv_cndmask_b32 v{vT+2}, v{vT+2}, v{vT+3}, vcc")
        for r in range(4): A(f"v_cmp_eq_u32 vcc, {r}, v{vT}\nv_cndmask_b32 v{vMASK+r}, 0, v{vT+2}, vcc")
        A(f"s_waitcnt vmcnt({5 + ny + (1 if c['dyn'] else 0)})")
        vals = list(range(vU + 16, vU + 34))
        for t in range(3):
            for i in range(3):
                A(f"v_lshlrev_b32 v{vals[6*t+2*i]}, 16, v{vU+4+4*t+i}\nv_and_b32 v{vals[6*t+2*i+1]}, s{sHI}, v{vU+4+4*t+i}")
        self.layernorm(vals, [self.Q1, self.Q2, self.HM, self.RM, "p16"], vU + 36)
        A(f"v_add_u32 v{vU}, {L_XN}, v{vU}")
        for t in range(3):
            for i in range(3):
                A(f"v_cvt_pk_bf16_f32 v{vU+4+4*t+i}, v{vals[6*t+2*i]}, v{vals[6*t+2*i+1]}")
                A(f"ds_write_b32 v{vU}, v{vU+4+4*t+i} offset:{384*t+4*i}")
        A(f"v_and_b32 v{vT}, 1, v{vLANE}\nv_mul_u32_u24 v{vT}, 1152, v{vT}\nv_lshl_add_u32 v{vT}, v{vG}, 4, v{vT}\ns_lshl_b32 s{sB}, s{sB}, 1\ns_add_u32 s{sB}, s{sB}, {L_XN}\nv_add_u32 v{vU+2}, s{sB}, v{vT}")
        A(f"s_cmp_lt_u32 s{sI1}, 2\ns_cselect_b32 s{sB}, 256, 0\nv_add_u32 v{vU+3}, s{sB}, v{vU+2}")
        self.tr_base(vQA, 128)
        A(f"s_lshl_b32 s{sB}, s{sWAVE}, 5\ns_add_u32 s{sB}, s{sB}, {L_QST}\nv_add_u32 v{vU+1}, s{sB}, v{vQA}")
        A(f"s_waitcnt vmcnt({ny}) lgkmcnt(0)\ns_barrier")
        X = vU + 40; Wf = vU + 60; Dq = vU + 80
        for j in range(5):
            if j < 4: A(f"ds_read_b128 {vr(X+4*j)}, v{vU+2} offset:{64*j}")
            else: A(f"ds_read_b128 {vr(X+4*j)}, v{vU+3}")
            A(f"ds_read_b64_tr_b16 {vr(Wf+4*j,2)}, v{vU+1} offset:{4096*j}\nds_read_b64_tr_b16 {vr(Wf+4*j+2,2)}, v{vU+1} offset:{4096*j+512}")
        A(f"s_add_u32 s{sTAG}, s{sEPO}, 1\ns_and_b32 s{sTAG}, s{sTAG}, 0xff\nv_mov_b32 v{vTAG}, s{sTAG}")
        A(f"v_and_b32 v{vT}, 15, v{vLANE}\nv_lshlrev_b32 v{vT+1}, 14, v{vT}\nv_lshl_add_u32 v{vT+1}, v{vG}, 4, v{vT+1}\nv_cmp_gt_u32 vcc, 2, v{vT}\nv_mov_b32 v{vT+2}, {OOB:#x}\nv_cndmask_b32 v{vT+1}, v{vT+2}, v{vT+1}, vcc")
        A(f"s_lshl_b32 s{sB}, s{sI1}, 15\ns_lshl_b32 s{sC}, s{sI0}, 8\ns_add_u32 s{sB}, s{sB}, s{sC}\ns_lshl_b32 s{sC}, s{sWAVE}, 6\ns_add_u32 s{sB}, s{sB}, s{sC}\ns_add_u32 s{sB}, s{sB}, {WS_QP}")
        for j in range(5):
            A(f"s_waitcnt lgkmcnt({3*(4-j)})")
            A(f"v_mfma_f32_16x16x32_bf16 {vr(Dq)}, {vr(Wf+4*j)}, {vr(X+4*j)}, {'0' if j == 0 else vr(Dq)}")
        self.tagw(range(Dq, Dq + 4), 15)
        A(f"buffer_store_dwordx4 {vr(Dq)}, v{vT+1}, {sr(RWS)}, s{sB} offen sc1")
        self.stamp(1)
    def tr_base(self, d, stride, packed=False):
        A = self.A
        if packed:
            A(f"v_bfe_u32 v{vT}, v{vLANE}, 2, 2\nv_lshlrev_b32 v{vT}, 2, v{vT}\nv_add_u32 v{vT}, v{vT}, v{vG}\nv_lshlrev_b32 v{vT}, 1, v{vT}\nv_mul_u32_u24 v{vT}, {stride}, v{vT}\nv_and_b32 v{vT+1}, 3, v{vLANE}\nv_lshl_add_u32 v{d}, v{vT+1}, 3, v{vT}")
            return
        A(f"v_bfe_u32 v{vT}, v{vLANE}, 2, 2\nv_lshl_add_u32 v{vT}, v{vG}, 3, v{vT}\nv_mul_u32_u24 v{vT}, {stride}, v{vT}\nv_and_b32 v{vT+1}, 3, v{vLANE}\nv_lshl_add_u32 v{d}, v{vT+1}, 3, v{vT}")
    def kload_first(self, n):
        A = self.A
        if n % 4 == 0 and n: A(f"s_add_u32 s{sTMP}, s{sCUR}, {16384*(n//4)}")
        so = sCUR if n < 4 else sTMP
        A(f"buffer_load_dwordx4 {vr(vRING+4*n)}, v{vKOFF}, {sr(RK)}, s{so} offen offset:{1024*(n%4)} nt")
    def q_issue(self, with_k=True):
        A = self.A
        if with_k:
            for n in range(8, 16): self.kload_first(n)
            A(f"v_bfe_u32 v{vT}, v{vLANE}, 3, 1\nv_lshlrev_b32 v{vT}, 16, v{vT}\nv_bfe_u32 v{vT+1}, v{vLANE}, 2, 1\nv_lshl_add_u32 v{vT}, v{vT+1}, 9, v{vT}")
            A(f"v_lshl_add_u32 v{vT}, v{vG}, 7, v{vT}\nv_and_b32 v{vT+1}, 3, v{vLANE}\nv_lshl_add_u32 v{vU}, v{vT+1}, 5, v{vT}")
            A(f"s_lshl_b32 s{sA}, s{sGRP}, 10\ns_add_u32 s{sA}, s{sA}, {WS_QP}\ns_add_u32 s{sB}, s{sA}, 32768")
        for i, so in enumerate((sA, sB)):
            A(f"buffer_load_dwordx4 {vr(vU+4+8*i)}, v{vU}, {sr(RWS)}, s{so} offen sc1\nbuffer_load_dwordx4 {vr(vU+8+8*i)}, v{vU}, {sr(RWS)}, s{so} offen offset:16 sc1")

    def dma_stream(self, items, state, between=None):
        A = self.A; WD = self.c["WD"]
        for k, (voff, srd, soff_expr, lds) in enumerate(items):
            if state[0] >= WD:
                A(f"s_waitcnt vmcnt({WD-1})"); state[0] = WD - 1
            sreg, add = soff_expr
            A(f"s_add_u32 s{sTMP}, s{sreg}, {add}")
            self.dma(voff, srd, sTMP, (sE, lds)); state[0] += 1
            if between: between(k)
    def tr_reads(self, areg, vaddr, offs):
        return [f"ds_read_b64_tr_b16 {ar(areg+2*i,2)}, v{vaddr} offset:{o}" for i, o in enumerate(offs)]
    def spread(self, lst, n):
        per = -(-len(lst) // n)
        def f(k):
            for x in lst[k*per:(k+1)*per]: self.A(x)
        return f
    def stage_o(self):
        A = self.A
        A(f"s_lshr_b32 s{sI0}, s{sT1}, 4\ns_and_b32 s{sI1}, s{sT1}, 15")
        self.srd(RWA, sWO, 4096 * 1152)
        A(f"v_lshrrev_b32 v{vT}, 3, v{vLANE}\nv_mul_u32_u24 v{vT}, 1152, v{vT}\nv_and_b32 v{vT+1}, 7, v{vLANE}\nv_lshl_add_u32 v{vU+1}, v{vT+1}, 4, v{vT}")
        A(f"s_lshl_b32 s{sC}, s{sI0}, 9\ns_lshl_b32 s{sD}, s{sWAVE}, 3\ns_add_u32 s{sC}, s{sC}, s{sD}\ns_mul_i32 s{sC}, s{sC}, 1152\ns_lshl_b32 s{sD}, s{sI1}, 7\ns_add_u32 s{sC}, s{sC}, s{sD}")
        A(f"s_lshl_b32 s{sE}, s{sWAVE}, 10")
        st = [9]
        self.dma_stream([(vU + 1, RWA, (sC, 32 * 1152 * j), L_R1 + 4096 * j) for j in range(16)], st)
        self.q_issue()
        self.tr_base(vU + 1, 128, packed=True)
        A(f"s_lshl_b32 s{sD}, s{sWAVE}, 5\nv_add_u32 v{vU+1}, s{sD}, v{vU+1}")
        A("s_waitcnt vmcnt(12)\ns_barrier")
        for x in self.tr_reads(0, vU + 1, [L_R1 + 4096 * (i // 2) + 128 * (i % 2) for i in range(32)]): A(x)
    def stage_ffn(self):
        A = self.A
        A(f"s_mov_b32 s{sI0}, s{sT1}")
        self.srd(RWA, sW1, 576 * 9216); self.srd(RWB, sW3, 576 * 9216)
        A(f"v_lshrrev_b32 v{vT}, 3, v{vLANE}\nv_mul_u32_u24 v{vT}, 9216, v{vT}\nv_and_b32 v{vT+1}, 7, v{vLANE}\nv_lshl_add_u32 v{vU+1}, v{vT+1}, 4, v{vT}")
        A(f"s_mul_i32 s{sC}, s{sWAVE}, {8*9216}\ns_lshl_b32 s{sD}, s{sI0}, 7\ns_add_u32 s{sC}, s{sC}, s{sD}")
        A(f"s_lshl_b32 s{sE}, s{sWAVE}, 10")
        A(f"s_lshl_b32 s{sD}, s{sWAVE}, 5\nv_add_u32 v{vU+2}, s{sD}, v{vQA}\nv_add_u32 v{vU+3}, {L_R2}, v{vU+2}")
        A("s_barrier")
        G = [(vU + 1, RWA, (sC, 32 * 9216 * j), L_R1 + 4096 * j) for j in range(18)]
        U = [(vU + 1, RWB, (sC, 32 * 9216 * j), L_R2 + 4096 * j) for j in range(18)]
        WD = self.c["WD"]; st = [9]
        def offs(): return [4096 * (i // 2) + 512 * (i % 2) for i in range(36)]
        def rd(areg, va, vb):
            o = offs(); out = []
            for i in range(36):
                if o[i] < 65536 - 4096: out.append(f"ds_read_b64_tr_b16 {ar(areg+2*i,2)}, v{va} offset:{o[i]}")
                else: out.append(f"ds_read_b64_tr_b16 {ar(areg+2*i,2)}, v{vb} offset:{o[i]-32768}")
            return out
        A(f"v_add_u32 v{vU+20}, 32768, v{vU+2}\nv_add_u32 v{vU+21}, 32768, v{vU+3}")
        self.dma_stream(G + U[:WD], st)
        A(f"s_waitcnt vmcnt({WD})\ns_barrier"); st[0] = min(st[0], WD)
        self.dma_stream(U[WD:], st, self.spread(rd(0, vU + 2, vU + 20), 18 - WD))
        A("s_waitcnt lgkmcnt(0)\ns_barrier")
        self.srd(RWA, sW2, 4608 * 1152)
        A(f"s_mul_i32 s{sC}, s{sI0}, {64*1152}\ns_lshl_b32 s{sD}, s{sWAVE}, 10\ns_add_u32 s{sC}, s{sC}, s{sD}")
        W2 = [(vVOFF, RWA, (sC, 4096 * j), L_R1 + 4096 * j) for j in range(18)]
        self.dma_stream(W2[:WD], st)
        A(f"s_waitcnt vmcnt({WD})\ns_barrier"); st[0] = min(st[0], WD)
        self.dma_stream(W2[WD:], st, self.spread(rd(72, vU + 3, vU + 21), 18 - WD))
        self.q_issue()
        self.tr_base(vU + 1, 1152)
        A(f"s_mul_i32 s{sD}, s{sWAVE}, 288\nv_add_u32 v{vU+1}, s{sD}, v{vU+1}")
        A("s_waitcnt vmcnt(12)\ns_barrier")
        for j in range(9):
            for s in range(2):
                for hh in range(2):
                    A(f"ds_read_b64_tr_b16 {ar(144+8*j+4*s+2*hh,2)}, v{vU+1} offset:{L_R1 + 36864*s + 4608*hh + 32*j}")
    def q_finish(self):
        A = self.A
        again, done = self.lab("qa"), self.lab("qd")
        self.tail_consts()
        A("s_waitcnt vmcnt(0)\ns_branch L_qchk\nL_qagain:")
        self.q_issue(with_k=False)
        A("s_waitcnt vmcnt(0)\nL_qchk:")
        R = list(range(vU + 4, vU + 20))
        A(f"v_and_b32 v{vT+2}, 15, v{vTAG}")
        self.check(R, 15, vT, vT + 2)
        self.retry("L_qagain", done)
        A.label(done)
        for i in range(8): A(f"v_add_f32 v{R[i]}, v{R[i]}, v{R[i+8]}")
        for i in range(8): A(f"v_add_f32_dpp v{R[i+8]}, v{R[i]}, v{R[i]} row_ror:8 row_mask:0xf bank_mask:0xf")
        for i in range(4): A(f"v_cvt_pk_bf16_f32 v{R[i]}, v{R[8+2*i]}, v{R[9+2*i]}")
        A(f"v_and_b32 v{vT}, 8, v{vLANE}\nv_cmp_eq_u32 vcc, 0, v{vT}")
        for i in range(4): A(f"v_cndmask_b32 v{vBQ+i}, 0, v{R[i]}, vcc")
        for i in range(4): A(f"v_sub_u32 v{vBQ+4+i}, v{R[i]}, v{vBQ+i}")
        for i in range(4): A(f"v_mov_b32 v{vACC+i}, 0")
        A(f"v_mov_b32 v{vM}, 0xff61b1e6\nv_mov_b32 v{vL}, 0\ns_waitcnt lgkmcnt(0)")
        self.stamp(2)
        if self.c["dbg"]: A("s_memrealtime s[92:93]")
        if self.c["tilelog"]: A(f"s_mov_b32 s18, 0\nv_mov_b32 v{vLOG}, 0")
        self.tlog()

    def extract(self, t):
        d = vDK + 4 * (t & 1); s = vS + t
        o = [f"v_mov_b32_dpp v{s}, v{d} quad_perm:[0,0,0,0] row_mask:0xf bank_mask:0xf"]
        for r in range(1, 4): o.append(f"v_add_f32_dpp v{s}, v{d+r}, v{s} quad_perm:[{r},{r},{r},{r}] row_mask:0xf bank_mask:0xf")
        return o
    def roundp(self, t):
        a, b, x = vS + t, vS + t + 1, vT
        if not self.c["round_scores"]:
            return [f"v_mul_f32 v{a}, s{sSCALE}, v{a}", f"v_mul_f32 v{b}, s{sSCALE}, v{b}"]
        return [f"v_cvt_pk_bf16_f32 v{x}, v{a}, v{b}", f"v_lshlrev_b32 v{a}, 16, v{x}", f"v_and_b32 v{b}, s{sHI}, v{x}",
                f"v_mul_f32 v{a}, s{sSCALE}, v{a}", f"v_mul_f32 v{b}, s{sSCALE}, v{b}",
                f"v_cvt_pk_bf16_f32 v{x}, v{a}, v{b}", f"v_lshlrev_b32 v{a}, 16, v{x}", f"v_and_b32 v{b}, s{sHI}, v{x}"]
    def maxp(self, t):
        return [f"v_max3_f32 v{vMX}, v{vM if t == 0 else vMX}, v{vS+t}, v{vS+t+1}"]
    def pexp(self, t):
        s = vS + t
        return [f"v_fma_f32 v{s}, v{s}, s{sLOG2E}, v{vMC}", f"v_exp_f32 v{s}, v{s}", f"v_add_f32 v{vL}, v{vL}, v{s}", f"v_cvt_pk_bf16_f32 v{s}, v{s}, v{s}"]
    def bprep(self, n):
        p = vS + (n >> 1); b = vBP + 4 * (n & 1); o = []
        for r in range(4):
            if (r >> 1) == (n & 1): o.append(f"v_and_b32 v{b+r}, v{p}, v{vMASK+r}")
            else: o.append(f"v_and_b32_dpp v{b+r}, v{p}, v{vMASK+r} row_ror:8 row_mask:0xf bank_mask:0xf")
        return o
    def tile(self, NK, D, issue, first=False, part="both"):
        A0 = self.A; NT = NK // 2; nc = self.c["nocomp"]
        def A(text):
            for x in text.split("\n"):
                if nc >= 1 and x.startswith("v_") and not x.startswith("v_mfma"): continue
                if nc >= 2 and x.startswith("v_mfma"): continue
                A0(x)
        def emit(l):
            for x in l: A(x)
        if part in ("both", "k"):
            for n in range(NK):
                if not first: A(f"s_waitcnt vmcnt({D-1})")
                d = vDK + 4 * ((n >> 1) & 1)
                A(f"v_mfma_f32_16x16x32_bf16 {vr(d)}, {vr(vRING+4*(n%16))}, {vr(vBQ+4*(n&1))}, {'0' if n % 2 == 0 else vr(d)}")
                if not (first and n + D < NK): issue(n + D)
                if n >= 3 and n % 2 == 1: emit(self.extract((n - 3) // 2))
                if n >= 6 and n % 4 == 2: emit(self.roundp((n - 6) // 2)); emit(self.maxp((n - 6) // 2))
        if part in ("both", "v"):
            emit(self.extract(NT - 1)); emit(self.roundp(NT - 2)); emit(self.maxp(NT - 2))
            if not nc: self.allred("v_max_f32", vMX, vT, ["row_ror:8", "p16", "p32"])
            A(f"v_sub_f32 v{vALPHA}, v{vM}, v{vMX}\nv_mul_f32 v{vMC}, s{sLOG2E}, v{vMX}\nv_mul_f32 v{vALPHA}, s{sLOG2E}, v{vALPHA}\nv_sub_f32 v{vMC}, 0, v{vMC}")
            A(f"v_exp_f32 v{vALPHA}, v{vALPHA}\nv_mov_b32 v{vM}, v{vMX}\nv_mul_f32 v{vL}, v{vL}, v{vALPHA}")
            emit(self.pexp(0))
            for r in range(4): A(f"v_mul_f32 v{vACC+r}, v{vACC+r}, v{vALPHA}")
            emit(self.bprep(0))
            for n in range(NK):
                A(f"s_waitcnt vmcnt({D-1})")
                A(f"v_mfma_f32_16x16x32_bf16 {vr(vACC)}, {vr(vRING+4*((NK+n)%16))}, {vr(vBP+4*(n&1))}, {vr(vACC)}")
                issue(NK + n + D)
                if n % 2 == 0 and n // 2 + 1 < NT: emit(self.pexp(n // 2 + 1))
                if n + 1 < NK: emit(self.bprep(n + 1))
                for z in range(self.c["pad"]): A(f"v_mov_b32 v{61 + (z & 1)}, v{vLANE}")
    def ld(self, slot, voff, srd, so, imm):
        pol = self.c["kpol"] if srd == RK else self.c["vpol"] if srd == RV else "nt"
        self.A(f"buffer_load_dwordx4 {vr(vRING+4*slot)}, v{voff}, {sr(srd)}, s{so} offen offset:{imm} {pol}")
    def stream(self):
        A = self.A; D, DS = self.c["D"], self.c["DS"]
        assert 4 <= D <= 8 and D <= DS <= 8
        grp = [None]
        def big_issue(m):
            if m < 32:
                j = m % 16; voff, srd = (vKOFF, RK) if m < 16 else (vVOFF, RV)
                if j >= 4 and grp[0] != j // 4:
                    A(f"s_add_u32 s{sTMP}, s{sCUR}, {16384*(j//4)}"); grp[0] = j // 4
                self.ld(m % 16, voff, srd, sCUR if j < 4 else sTMP, 1024 * (j % 4))
            else:
                j = m - 32
                if j < 4: self.ld(j, vKOFF, RK, sNXT, 1024 * j)
                else: self.ld(j, vDYN, RDYN, sDSO, 1024 * (j % 4))
        def top():
            A(f"s_add_u32 s{sNXT}, s{sCUR}, 65536\ns_add_u32 s{sDSO}, s{sCUR}, {65536+16384}")
            A(f"s_cmp_gt_u32 s{sNB}, 1\ns_cselect_b64 s[{sM0}:{sM1}], -1, 0\ns_cselect_b32 s{RDYN}, s{RK}, s{RV}\ns_cselect_b32 s{RDYN+1}, s{RK+1}, s{RV+1}\ns_cselect_b32 s{sDSO}, s{sDSO}, s{sNXT}")
            A(f"v_cndmask_b32 v{vDYN}, v{vVOFF}, v{vKOFF}, s[{sM0}:{sM1}]")
            A(f"s_add_u32 s{sA}, s{sNB}, s{sNS}\ns_cmp_gt_u32 s{sA}, 1\ns_cselect_b32 s{sNXT}, s{sNXT}, {OOB:#x}\ns_cselect_b32 s{sDSO}, s{sDSO}, {OOB:#x}")
        A(f"s_mov_b32 s{RDYN+2}, {1<<23}\ns_mov_b32 s{RDYN+3}, 0x20000")
        top()
        self.tile(16, D, big_issue, first=True, part="k")
        at_mid = grp[0]; grp[0] = None
        A("s_branch L_mid\n.p2align 6\nL_big:")
        self.tile(16, D, big_issue, part="k")
        assert at_mid == grp[0] or D <= 4
        A("L_mid:")
        self.tile(16, D, big_issue, part="v")
        self.tlog()
        A(f"s_mov_b32 s{sCUR}, s{sNXT}\ns_sub_u32 s{sNB}, s{sNB}, 1\ns_cmp_eq_u32 s{sNB}, 0\ns_cbranch_scc1 L_small_entry")
        top()
        A("s_branch L_big\nL_small_entry:")
        self.stamp(8)
        if self.c["pf2"]:
            A(f"s_lshr_b32 s{sA}, s2, 3\ns_and_b32 s{sA}, s{sA}, 3\ns_lshl_b32 s{sA}, s{sA}, 2\ns_add_u32 s{sA}, s{sA}, s{sWAVE}\ns_lshl_b32 s{sA}, s{sA}, 10")
            A(f"s_add_u32 s{sA}, s{sA}, L_stream_done-L_pc\ns_min_u32 s{sA}, s{sA}, L_tail_end-L_pc-1024\nv_add_u32 v{vT}, s{sA}, v{vVOFF}")
            A(f"global_load_dwordx4 {vr(vU+120)}, v{vT}, s[{sPC0}:{sPC0+1}]")
        A(f"s_cmp_eq_u32 s{sNS}, 0\ns_cbranch_scc1 L_stream_done")
        for j in range(D, DS): self.ld(j, vVOFF, RV, sCUR, 1024 * (j % 4))
        def small_issue(m):
            so = sCUR if m < 8 else sNXT; j = m % 8
            if j < 4: self.ld(j, vKOFF, RK, so, 1024 * j)
            else: self.ld(j, vVOFF, RV, so, 1024 * (j - 4))
        if not self.c["dyn"]:
            A("L_small:")
            A(f"s_add_u32 s{sNXT}, s{sCUR}, 16384\ns_cmp_gt_u32 s{sNS}, 1\ns_cselect_b32 s{sNXT}, s{sNXT}, {OOB:#x}")
            self.tile_small(DS, small_issue)
            A(f"s_mov_b32 s{sCUR}, s{sNXT}\ns_sub_u32 s{sNS}, s{sNS}, 1\ns_cmp_lg_u32 s{sNS}, 0\ns_cbranch_scc1 L_small")
        else:
            base = 4 * self.c["NB"] + 3
            ca, cb, cc = self.c["chunks"]
            assert base + 4 * ca + 2 * cb + cc == 64
            vMB = vBP
            sWR, sPEND = sT0, sNB
            A(f"s_mov_b32 s{sMBI}, {L_MB+4}\ns_mov_b32 s{sWR}, {L_MB+12}\ns_mov_b32 s{sPEND}, 0\ns_lshl_b32 s{sB}, s{sWAVE}, 12\nv_min_u32 v{vDYN}, 3, v{vLANE}")
            A(".p2align 6\nL_small:")
            A(f"v_mov_b32 v{vMB}, s{sMBI}\ns_cmp_lg_u32 s{sWAVE}, 0\ns_cbranch_scc1 L_mb_read")
            A(f"s_cmp_lg_u32 s{sPEND}, 1\ns_cbranch_scc1 L_mb_idle")
            A("s_waitcnt lgkmcnt(0)")
            if self.c["fake"]:
                A(f"s_lshl_b32 s{sTK}, s{sEPO+0}, 0" if False else f"s_lshl_b32 s{sTK}, s{sFK}, 3\ns_add_u32 s{sTK}, s{sTK}, s{sSPLIT}\ns_add_u32 s{sFK}, s{sFK}, 1")
            A(f"s_lshr_b32 s{sC}, s{sTK}, 3\ns_add_u32 s{sA}, s{sC}, {base + 3*ca + cb}\ns_mov_b32 s{sD}, 1")
            A(f"s_lshl_b32 s{sE}, s{sC}, 1\ns_add_u32 s{sE}, s{sE}, {base + 2*ca}\ns_cmp_lt_u32 s{sC}, {ca+cb}\ns_cselect_b32 s{sA}, s{sE}, s{sA}\ns_cselect_b32 s{sD}, 2, s{sD}")
            A(f"s_lshl_b32 s{sE}, s{sC}, 2\ns_add_u32 s{sE}, s{sE}, {base}\ns_cmp_lt_u32 s{sC}, {ca}\ns_cselect_b32 s{sA}, s{sE}, s{sA}\ns_cselect_b32 s{sD}, 4, s{sD}")
            A(f"s_and_b32 s{sE}, s{sTK}, 7\ns_lshl_b32 s{sE}, s{sE}, 6\ns_add_u32 s{sA}, s{sA}, s{sE}")
            A(f"s_cmp_lt_u32 s{sC}, {ca+cb+cc}\ns_cselect_b32 s{sA}, s{sA}, {NULL_TILE:#x}\ns_cselect_b32 s{sPEND}, 0, 2")
            A(f"v_add_u32 v{vMB+2}, s{sA}, v{vDYN}\nv_cmp_gt_u32 vcc, s{sD}, v{vDYN}\nv_lshl_add_u32 v{vMB+3}, v{vDYN}, 2, s{sWR}\nv_cndmask_b32 v{vMB+2}, -1, v{vMB+2}, vcc")
            A(f"s_lshl_b32 s{sD}, s{sD}, 2\ns_add_u32 s{sWR}, s{sWR}, s{sD}\nds_write_b32 v{vMB+3}, v{vMB+2}")
            A(f"L_mb_idle:\nds_read_b32 v{vMB+1}, v{vMB}\ns_add_u32 s{sA}, s{sMBI}, 8\ns_cmp_gt_u32 s{sWR}, s{sA}\ns_cbranch_scc1 L_mb_wait\ns_cmp_lg_u32 s{sPEND}, 0\ns_cbranch_scc1 L_mb_wait")
            A(f"s_waitcnt lgkmcnt(0)\ns_mov_b32 s{sTK}, 1\ns_mov_b32 s{sPEND}, 1")
            if self.c["fake"] != 2: A(f"s_atomic_add s{sTK}, s[{sCNT}:{sCNT+1}], 0 glc")
            A("s_branch L_mb_got")
            A(f"L_mb_read:\nds_read_b32 v{vMB+1}, v{vMB}")
            A(f"L_mb_wait:\ns_waitcnt lgkmcnt(0)\nL_mb_got:\nv_readfirstlane_b32 s{sNS}, v{vMB+1}\ns_cmp_lg_u32 s{sNS}, -1\ns_cbranch_scc1 L_mb_ok")
            A(f"s_sub_u32 s{sSPIN}, s{sSPIN}, 1\ns_cmp_lg_u32 s{sSPIN}, 0\ns_cbranch_scc1 L_mb_read\ns_mov_b32 s{sNS}, {NULL_TILE:#x}\ns_mov_b32 s{sSPIN}, 1")
            A(f"L_mb_ok:\ns_lshl_b32 s{sNXT}, s{sNS}, 14\ns_add_u32 s{sNXT}, s{sNXT}, s{sB}\ns_add_u32 s{sMBI}, s{sMBI}, 4")
            self.tile_small(DS, small_issue)
            self.tlog()
            A(f"s_mov_b32 s{sCUR}, s{sNXT}\ns_cmp_lt_u32 s{sNS}, 512\ns_cbranch_scc1 L_small")
        A("L_stream_done:")
    def tile_small(self, D, issue):
        A = self.A
        self.tile(4, D, issue)

    def tail_consts(self):
        A = self.A
        A(f"s_lshl_b32 s{sC}, s{sWAVE}, 10\ns_add_u32 s{sC}, s{sC}, {L_OW}\nv_add_u32 v{vC}, s{sC}, v{vVOFF}")
        A(f"s_lshl_b32 s{sC}, s{sWAVE}, 9\ns_add_u32 s{sC}, s{sC}, {L_MLW}\nv_lshl_add_u32 v{vC+1}, v{vLANE}, 3, s{sC}")
        A(f"v_bfe_u32 v{vT}, v{vLANE}, 2, 1\nv_lshlrev_b32 v{vT+1}, 9, v{vT}\nv_lshl_add_u32 v{vT+1}, v{vG}, 7, v{vT+1}\nv_bfe_u32 v{vT+2}, v{vLANE}, 3, 1\nv_lshl_add_u32 v{vT+1}, v{vT+2}, 6, v{vT+1}")
        A(f"v_and_b32 v{vT+2}, 3, v{vLANE}\nv_lshl_add_u32 v{vC+2}, v{vT+2}, 4, v{vT+1}")
        A(f"v_lshlrev_b32 v{vT}, 4, v{vT}\nv_add_u32 v{vT}, 1024, v{vT}\nv_and_b32 v{vT+1}, 0x3b, v{vLANE}\nv_cmp_eq_u32 vcc, 0, v{vT+1}\nv_mov_b32 v{vT+2}, {OOB:#x}\nv_cndmask_b32 v{vC+3}, v{vT+2}, v{vT}, vcc")
        A(f"s_lshl_b32 s{sC}, s{sWAVE}, 2\ns_add_u32 s{sC}, s{sC}, 1152\nv_mov_b32 v{vT}, s{sC}\nv_cmp_eq_u32 vcc, 0, v{vLANE}\nv_cndmask_b32 v{vF1}, v{vT+2}, v{vT}, vcc")
        A(f"s_mul_i32 s{sOPA}, s2, {OP_STRIDE}\ns_add_u32 s{sOPA}, s{sOPA}, {WS_OP}")
        A(f"s_mov_b32 s{sOPS}, {OP_STRIDE}\ns_mov_b32 s{sNLOG2E}, {LOG2E | 0x80000000:#x}")
    def publish_partial(self):
        A = self.A; ST = self.c["stpol"]
        if self.c["dbg"]: A("s_memrealtime s[90:91]")
        self.stamp(3)
        if self.c["hint1"]: A(f"buffer_store_dword v{vTAG}, v{vF1}, {sr(RWS)}, s{sOPA} offen {ST}")
        A(f"ds_write_b128 v{vC}, {vr(vACC)}")
        self.allred("v_add_f32", vL, vT, ["row_ror:8", "p16", "p32"])
        A(f"ds_write_b64 v{vC+1}, {vr(vM,2)}")
        A("s_waitcnt lgkmcnt(0)\ns_barrier")
        self.stamp(9)
        A(f"s_cmp_lg_u32 s{sWAVE}, 0\ns_cbranch_scc1 L_dispatch")
        O = vU + 4; ML = vU + 20; F = vU + 28; R = vU + 32; G = vU + 36
        for w in range(4): A(f"ds_read_b64 {vr(ML+2*w,2)}, v{vC+1} offset:{512*w}")
        for w in range(4): A(f"ds_read_b128 {vr(O+4*w)}, v{vC} offset:{1024*w}")
        A("s_waitcnt lgkmcnt(4)")
        A(f"v_max3_f32 v{G}, v{ML}, v{ML+2}, v{ML+4}\nv_max_f32 v{G}, v{G}, v{ML+6}\nv_mul_f32 v{G+2}, s{sLOG2E}, v{G}")
        for w in range(4): A(f"v_fma_f32 v{F+w}, v{ML+2*w}, s{sLOG2E}, -v{G+2}")
        for w in range(4): A(f"v_exp_f32 v{F+w}, v{F+w}")
        A(f"s_waitcnt lgkmcnt(3)\nv_pk_mul_f32 {vr(R,2)}, {vr(O,2)}, {vr(F,2)} op_sel_hi:[1,0]\nv_pk_mul_f32 {vr(R+2,2)}, {vr(O+2,2)}, {vr(F,2)} op_sel_hi:[1,0]")
        for w in range(1, 4):
            fb = F + (w & ~1); sel = "op_sel:[0,1,0] op_sel_hi:[1,1,1]" if w & 1 else "op_sel_hi:[1,0,1]"
            A(f"s_waitcnt lgkmcnt({3-w})")
            for h in (0, 2): A(f"v_pk_fma_f32 {vr(R+h,2)}, {vr(O+4*w+h,2)}, {vr(fb,2)}, {vr(R+h,2)} {sel}")
        self.tagw([R], f"s{sFF}")
        A(f"buffer_store_dwordx4 {vr(R)}, v{vC+2}, {sr(RWS)}, s{sOPA} offen {ST}")
        A(f"v_mul_f32 v{G+1}, v{F}, v{ML+1}")
        for w in range(1, 4): A(f"v_fmac_f32 v{G+1}, v{F+w}, v{ML+2*w+1}")
        self.tagw([G, G + 1], f"s{sFF}")
        A(f"v_mov_b32 v{G+2}, v{G}\nv_mov_b32 v{G+3}, v{G+1}")
        A(f"buffer_store_dwordx4 {vr(G)}, v{vC+3}, {sr(RWS)}, s{sOPA} offen {ST}")
        A("L_dispatch:")
        self.stamp(4)
        A(f"s_cmp_eq_u32 s{sROLE}, {ROLE_FFN}\ns_cbranch_scc1 L_tail_ffn\ns_cmp_eq_u32 s{sROLE}, {ROLE_PLAIN}\ns_cbranch_scc1 L_finish")
    def tail_o(self):
        A = self.A; ST = self.c["stpol"]; LD = self.c["ldpol"]
        O = vU + 8; ML = vU + 40; X = vU + 48; Dq = vU + 44
        A(f"v_lshrrev_b32 v{vT}, 5, v{vLANE}\nv_mul_u32_u24 v{vT+3}, {128*OP_STRIDE}, v{vT}\nv_and_b32 v{vT+1}, 31, v{vLANE}\nv_lshl_add_u32 v{vU}, v{vT+1}, 4, v{vT+3}")
        A(f"v_and_b32 v{vT+2}, 7, v{vLANE}\nv_mad_u32_u24 v{vU+1}, v{vT+2}, s{sOPS}, v{vT+3}")
        A(f"v_mul_u32_u24 v{vT}, {XO_STRIDE}, v{vT}\nv_lshl_add_u32 v{vT}, v{vT+1}, 3, v{vT}")
        A(f"s_lshl_b32 s{sA}, s{sWAVE}, 8\ns_add_u32 s{sA}, s{sA}, {L_XO}\nv_add_u32 v{vU+2}, s{sA}, v{vT}")
        A(f"v_and_b32 v{vT}, 1, v{vLANE}\nv_mul_u32_u24 v{vT}, {XO_STRIDE}, v{vT}\nv_lshl_add_u32 v{vT}, v{vG}, 4, v{vT}\nv_add_u32 v{vU+3}, {L_XO}, v{vT}")
        A(f"v_and_b32 v{vT}, 15, v{vLANE}\nv_mul_u32_u24 v{vT+1}, 2304, v{vT}\nv_lshl_add_u32 v{vT+1}, v{vG}, 4, v{vT+1}\nv_cmp_gt_u32 vcc, 2, v{vT}\nv_mov_b32 v{vT+2}, {OOB:#x}\nv_cndmask_b32 v{vU+4}, v{vT+2}, v{vT+1}, vcc")
        A(f"s_lshl_b32 s{sA}, s{sI0}, 1\ns_lshr_b32 s{sB}, s{sWAVE}, 1\ns_add_u32 s{sA}, s{sA}, s{sB}\ns_and_b32 s{sB}, s{sWAVE}, 1")
        A(f"s_mul_i32 s{sC}, s{sA}, {8*OP_STRIDE}\ns_add_u32 s{sC}, s{sC}, {WS_OP}\ns_lshl_b32 s{sD}, s{sB}, 4\ns_add_u32 s{sA}, s{sC}, s{sD}\ns_lshl_b32 s{sD}, s{sB}, 9\ns_add_u32 s{sC}, s{sC}, s{sD}")
        A(f"s_add_u32 s{sD}, s{sC}, {3*OP_STRIDE}\ns_add_u32 s{sE}, s{sC}, {6*OP_STRIDE}\ns_lshl_b32 s{sNXT}, s{sB}, 4\ns_sub_u32 s{sNXT}, s{sA}, s{sNXT}")
        A(f"s_mul_i32 s{sB}, s{sI0}, 4608\ns_lshl_b32 s{sTMP}, s{sI1}, 8\ns_add_u32 s{sB}, s{sB}, s{sTMP}\ns_lshl_b32 s{sTMP}, s{sWAVE}, 6\ns_add_u32 s{sB}, s{sB}, s{sTMP}\ns_add_u32 s{sB}, s{sB}, {WS_AP}")
        A(f"s_lshl_b32 s{sTMP}, s{sI0}, 3\ns_add_u32 s{sTMP}, s{sTMP}, s{sI0}\ns_add_u32 s{sTMP}, s{sTMP}, s{sI1}\ns_lshl_b32 s{sTMP}, s{sTMP}, 7\ns_add_u32 s{sTMP}, s{sTMP}, {WS_F2}")
        A(f"v_or_b32 v{vT}, s{sWAVE}, v{vLANE}\nv_cmp_eq_u32 vcc, 0, v{vT}\nv_cndmask_b32 v{vU+5}, v{vT+2}, v{vT}, vcc")
        if self.c["hint1"]:
            hd = self.lab("oh")
            A(f"L_ohint:\nbuffer_load_dwordx4 {vr(ML)}, v{vU+1}, {sr(RWS)}, s{sA} offen offset:1152 {LD}\ns_waitcnt vmcnt(0)".replace(f"s{sA} offen offset:1152", f"s{sNXT} offen offset:1152"))
            self.check(list(range(ML, ML + 4)), f"s{sFF}", vT)
            self.retry("L_ohint", hd); A.label(hd)
            self.xstamp("ohint")
        done = self.lab("od")
        Mx, Wt, Ls = vT + 2, vT + 3, vT + 4
        A("L_oagain:")
        A(f"buffer_load_dwordx4 {vr(ML)}, v{vU+1}, {sr(RWS)}, s{sA} offen offset:1024 {LD}")
        for s in range(8): A(f"buffer_load_dwordx4 {vr(O+4*s)}, v{vU}, {sr(RWS)}, s{(sC, sD, sE)[s // 3]} offen offset:{OP_STRIDE*(s%3)} {LD}")
        if self.c["hint2"] == 2: A(f"buffer_store_dword v{vTAG}, v{vU+5}, {sr(RWS)}, s{sTMP} offen {ST}")
        ex = 1 if self.c["hint2"] == 2 else 0
        A(f"s_waitcnt vmcnt({8+ex})")
        for r in range(4): A(f"v_xor_b32 v{ML+r}, v{ML+r}, v{vTAG}")
        A(f"v_max_f32_dpp v{Mx}, v{ML}, v{ML} {self.Q1} row_mask:0xf bank_mask:0xf\nv_or3_b32 v{vT}, v{ML}, v{ML+1}, v{ML+2}\nv_or_b32 v{vT}, v{vT}, v{ML+3}")
        self.allred("v_max_f32", Mx, vT + 1, [self.Q2, self.HM])
        A(f"v_sub_f32 v{Wt}, v{ML}, v{Mx}\nv_mul_f32 v{Wt}, s{sLOG2E}, v{Wt}\nv_exp_f32 v{Wt}, v{Wt}\nv_mul_f32 v{Ls}, v{Wt}, v{ML+1}")
        for x in (self.Q1, self.Q2, self.HM): A(f"v_add_f32_dpp v{Ls}, v{Ls}, v{Ls} {x} row_mask:0xf bank_mask:0xf")
        A(f"v_rcp_f32 v{Ls}, v{Ls}")
        for s in range(8):
            A(f"s_waitcnt vmcnt({7-s+ex})\nv_xor_b32 v{O+4*s}, v{O+4*s}, v{vTAG}")
            for r in (1, 2, 3, 0):
                op = "v_mul_f32_dpp" if s == 0 else "v_fmac_f32_dpp"
                A(f"{op} v{Dq+r}, v{Wt}, v{O+4*s+r} row_newbcast:{s} row_mask:0xf bank_mask:0xf")
            A(f"v_or_b32 v{vT}, v{vT}, v{O+4*s}")
        A(f"v_and_b32 v{vT}, s{sFF}, v{vT}\nv_cmp_ne_u32 vcc, 0, v{vT}")
        self.retry("L_oagain", done)
        A.label(done)
        self.stamp(5)
        if self.c["hint2"] == 1: A(f"buffer_store_dword v{vTAG}, v{vU+5}, {sr(RWS)}, s{sTMP} offen {ST}")
        for r in range(4): A(f"v_mul_f32 v{Dq+r}, v{Dq+r}, v{Ls}")
        A(f"v_cvt_pk_bf16_f32 v{Dq}, v{Dq}, v{Dq+1}\nv_cvt_pk_bf16_f32 v{Dq+1}, v{Dq+2}, v{Dq+3}\nds_write_b64 v{vU+2}, {vr(Dq,2)}")
        A("s_waitcnt lgkmcnt(0)\ns_barrier")
        self.xstamp("xobar")
        for s in range(16): A(f"ds_read_b128 {vr(X+4*s)}, v{vU+3} offset:{64*s}")
        for s in range(16):
            A(f"s_waitcnt lgkmcnt({15-s})")
            A(f"v_mfma_f32_16x16x32_bf16 {vr(Dq)}, {ar(4*s)}, {vr(X+4*s)}, {'0' if s == 0 else vr(Dq)}")
        self.tagw([Dq], f"s{sFF}")
        A(f"buffer_store_dwordx4 {vr(Dq)}, v{vU+4}, {sr(RWS)}, s{sB} offen {ST}")
        self.stamp(6)
        A("s_branch L_finish")
    def tail_ffn(self):
        A = self.A; ST = self.c["stpol"]; LD = self.c["ldpol"]
        A("L_tail_ffn:")
        P = vU + 16; XV = vU + 4; X = vU + 28; Dg = vU + 100; Du = vU + 104
        cA, cB, cC, cD, cE, cF, cG, cH = range(vU + 112, vU + 120)
        pr = lambda pg, t: P + 12 * pg + 4 * t
        A(f"v_and_b32 v{vT}, 1, v{vLANE}\nv_mul_u32_u24 v{vT+1}, 1152, v{vT}\nv_lshl_add_u32 v{vT+1}, v{vG}, 4, v{vT+1}\nv_add_u32 v{cA}, {L_XN}, v{vT+1}")
        A(f"v_lshlrev_b32 v{vT+1}, 7, v{vT}\nv_lshl_add_u32 v{vT+1}, v{vG}, 4, v{vT+1}\nv_add_u32 v{cB}, {L_ACT}, v{vT+1}")
        A(f"v_and_b32 v{vT}, 1, v{vG}\nv_lshlrev_b32 v{vT}, 7, v{vT}\nv_and_b32 v{vT+1}, 15, v{vLANE}\nv_lshl_add_u32 v{vT}, v{vT+1}, 1, v{vT}")
        A(f"s_lshl_b32 s{sA}, s{sWAVE}, 5\ns_add_u32 s{sA}, s{sA}, {L_ACT}\nv_add_u32 v{cC}, s{sA}, v{vT}")
        A(f"v_lshrrev_b32 v{vT}, 3, v{vLANE}\nv_mul_u32_u24 v{vT}, 4608, v{vT}\nv_and_b32 v{vT+1}, 7, v{vLANE}\nv_lshl_add_u32 v{cD}, v{vT+1}, 3, v{vT}")
        A(f"v_cmp_gt_u32 vcc, 16, v{vLANE}\nv_mov_b32 v{vT+2}, {OOB:#x}\nv_cndmask_b32 v{cE}, v{vT+2}, v{cD}, vcc")
        A(f"v_or_b32 v{vT}, s{sWAVE}, v{vLANE}\nv_cmp_eq_u32 s[{sM0}:{sM1}], 0, v{vT}\nv_cndmask_b32 v{cH}, v{vT+2}, v{vT}, s[{sM0}:{sM1}]")
        A(f"v_and_b32 v{vT}, 16, v{vLANE}\nv_cmp_ne_u32 s[{sM0}:{sM1}], 0, v{vT}")
        A(f"s_mul_i32 s{sA}, s{sWAVE}, {18*4608}\ns_lshl_b32 s{sB}, s{sI0}, 6\ns_add_u32 s{sA}, s{sA}, s{sB}\ns_add_u32 s{RWA}, s{sA}, {WS_RP}\ns_add_u32 s{RWA+1}, s{RWA}, {8*4608}\ns_add_u32 s{RWA+2}, s{RWA}, {16*4608}")
        A(f"s_cmp_ge_u32 s{sWAVE}, 2\ns_cbranch_scc1 L_ffn_b1")
        self.srd(RX, sX, 2304)
        A(f"v_lshlrev_b32 v{vT}, 3, v{vLANE}\nv_add_u32 v{vT+1}, 1024, v{vT}\nv_cndmask_b32 v{vT+1}, v{vT+2}, v{vT+1}, vcc\ns_mul_i32 s{sA}, s{sWAVE}, 1152")
        A(f"buffer_load_dwordx2 {vr(P,2)}, v{vT}, {sr(RX)}, s{sA} offen\nbuffer_load_dwordx2 {vr(P+2,2)}, v{vT}, {sr(RX)}, s{sA} offen offset:512\nbuffer_load_dwordx2 {vr(P+4,2)}, v{vT+1}, {sr(RX)}, s{sA} offen")
        A(f"v_add_u32 v{vT+3}, 2048, v{vVOFF}\nv_cndmask_b32 v{cF}, v{vT+2}, v{vT+3}, vcc\nv_cndmask_b32 v{cG}, 0, -1, vcc")
        A(f"s_add_u32 s{sA}, s{sA}, {L_XN}\nv_add_u32 v{vU}, s{sA}, v{vT}\nv_add_u32 v{vT+1}, 1024, v{vU}\nv_mov_b32 v{vT+3}, {L_OW}\nv_cndmask_b32 v{vU+1}, v{vT+3}, v{vT+1}, vcc")
        A(f"s_mul_i32 s{sA}, s{sWAVE}, 2304\ns_add_u32 s{sB}, s{sA}, {WS_AP}\ns_add_u32 s{sA}, s{sA}, {L_HB}\nv_add_u32 v{vU+2}, s{sA}, v{vVOFF}\nv_add_u32 v{vT+1}, 2048, v{vU+2}\nv_cndmask_b32 v{vU+3}, v{vT+3}, v{vT+1}, vcc")
        for pg in range(8): A(f"s_add_u32 s{sAP+pg}, s{sB}, {4608*pg}")
        A("s_waitcnt vmcnt(0)")
        for i in range(6): A(f"v_lshlrev_b32 v{XV+2*i}, 16, v{P+i}\nv_and_b32 v{XV+2*i+1}, s{sHI}, v{P+i}")
        pk = lambda d, x, y: A(f"v_pk_add_f32 {vr(d,2)}, {vr(x,2)}, {vr(y,2)}")
        def notices(base, again):
            hd = self.lab("nh")
            A(f"v_lshlrev_b32 v{P}, 7, v{vLANE}\nv_add_u32 v{P+1}, 8192, v{P}\nv_cmp_gt_u32 vcc, 8, v{vLANE}\nv_cndmask_b32 v{P+1}, v{P}, v{P+1}, vcc\ns_mov_b32 s{sTMP}, {base}")
            A(f"{again}:\nbuffer_load_dword v{P+2}, v{P}, {sr(RWS)}, s{sTMP} offen {LD}\nbuffer_load_dword v{P+3}, v{P+1}, {sr(RWS)}, s{sTMP} offen {LD}\ns_waitcnt vmcnt(0)")
            self.check([P + 2, P + 3], f"s{sFF}", vT)
            self.retry(again, hd); A.label(hd)
        if self.c["hint2"]: notices(WS_F2, "L_fhint"); self.xstamp("fhint")
        done = self.lab("fd")
        H = vU + 112 - 12 - 0
        H = P + 96 - 12
        A("L_fagain:")
        for pg in range(8):
            for t in range(3):
                if t < 2: A(f"buffer_load_dwordx4 {vr(pr(pg,t))}, v{vVOFF}, {sr(RWS)}, s{sAP+pg} offen offset:{1024*t} {LD}")
                else: A(f"buffer_load_dwordx4 {vr(pr(pg,t))}, v{cF}, {sr(RWS)}, s{sAP+pg} offen {LD}")
        for pg in range(8):
            A(f"s_waitcnt vmcnt({21-3*pg})")
            for t in range(3): A(f"v_xor_b32 v{pr(pg,t)}, v{pr(pg,t)}, v{vTAG}")
            if pg == 0: A(f"v_or_b32 v{vT}, v{pr(0,0)}, v{pr(0,1)}\nv_mov_b32 v{vT+1}, v{pr(0,2)}")
            else: A(f"v_or3_b32 v{vT}, v{vT}, v{pr(pg,0)}, v{pr(pg,1)}\nv_or_b32 v{vT+1}, v{vT+1}, v{pr(pg,2)}")
            for i in range(0, 12, 2): pk(P + i, XV + i if pg == 0 else P + i, P + i if pg == 0 else P + 12 * pg + i)
        A(f"v_and_or_b32 v{vT}, v{vT+1}, v{cG}, v{vT}\nv_and_b32 v{vT}, s{sFF}, v{vT}\nv_cmp_ne_u32 vcc, 0, v{vT}")
        self.retry("L_fagain", done)
        A.label(done)
        self.stamp(5)
        XV = P; P = P + 12
        S, Q = P, P + 2
        pk(S, XV, XV + 2); A(f"v_pk_mul_f32 {vr(Q,2)}, {vr(XV,2)}, {vr(XV,2)}")
        for i in range(2, 12, 2):
            if i > 2: pk(S, S, XV + i)
            A(f"v_pk_fma_f32 {vr(Q,2)}, {vr(XV+i,2)}, {vr(XV+i,2)}, {vr(Q,2)}")
        A(f"v_add_f32 v{S}, v{S}, v{S+1}\nv_add_f32 v{Q}, v{Q}, v{Q+1}")
        for st in (self.Q1, self.Q2, self.HM, self.RM):
            for v in (S, Q): A(f"v_add_f32_dpp v{v}, v{v}, v{v} {st} row_mask:0xf bank_mask:0xf")
        A(f"v_permlane16_swap_b32 v{S}, v{Q}\nv_add_f32 v{S}, v{S}, v{Q}\nv_mov_b32 v{Q}, v{S}\nv_permlane32_swap_b32 v{S}, v{Q}\nv_add_f32 v{S}, v{S}, v{Q}")
        A(f"v_mul_f32 v{S}, {INV576:#x}, v{S}\nv_mov_b32 v{Q}, v{S}\nv_permlane16_swap_b32 v{S}, v{Q}")
        A(f"v_fma_f32 v{Q}, -v{S}, v{S}, v{Q}\nv_max_f32 v{Q}, 0, v{Q}\nv_add_f32 v{Q}, {EPS:#x}, v{Q}\nv_rsq_f32 v{Q}, v{Q}\nv_mul_f32 v{S}, -v{S}, v{Q}")
        for t in range(3):
            y = P + 4 + 4 * t
            for h in (0, 2): A(f"v_pk_fma_f32 {vr(y+h,2)}, {vr(XV+4*t+h,2)}, {vr(Q,2)}, {vr(S,2)} op_sel_hi:[1,0,0]")
            A(f"v_cvt_pk_bf16_f32 v{y}, v{y}, v{y+1}\nv_cvt_pk_bf16_f32 v{y+1}, v{y+2}, v{y+3}")
            A(f"ds_write_b64 v{vU}, {vr(y,2)} offset:{512*t}" if t < 2 else f"ds_write_b64 v{vU+1}, {vr(y,2)}")
        A("s_waitcnt lgkmcnt(0)\ns_barrier")
        if self.c["hint3"]:
            A(f"s_lshl_b32 s{sTMP}, s{sI0}, 7\ns_add_u32 s{sTMP}, s{sTMP}, {WS_F3}\nbuffer_store_dword v{vTAG}, v{cH}, {sr(RWS)}, s{sTMP} offen {ST}")
        A(f"ds_write_b128 v{vU+2}, {vr(XV)}\nds_write_b128 v{vU+2}, {vr(XV+4)} offset:1024\nds_write_b128 v{vU+3}, {vr(XV+8)}")
        A("s_branch L_ffn_b1d\nL_ffn_b1:\ns_barrier\nL_ffn_b1d:")
        self.xstamp("xnbar")
        NPRE = 8
        for s in range(18):
            A(f"ds_read_b128 {vr(X+4*s)}, v{cA} offset:{64*s}")
            if s >= NPRE:
                k = s - NPRE
                A(f"s_waitcnt lgkmcnt({NPRE})")
                A(f"v_mfma_f32_16x16x32_bf16 {vr(Dg)}, {vr(X+4*k)}, {ar(4*k)}, {'0' if k == 0 else vr(Dg)}")
                A(f"v_mfma_f32_16x16x32_bf16 {vr(Du)}, {vr(X+4*k)}, {ar(72+4*k)}, {'0' if k == 0 else vr(Du)}")
        for k in range(18 - NPRE, 18):
            A(f"s_waitcnt lgkmcnt({17-k})")
            A(f"v_mfma_f32_16x16x32_bf16 {vr(Dg)}, {vr(X+4*k)}, {ar(4*k)}, {vr(Dg)}")
            A(f"v_mfma_f32_16x16x32_bf16 {vr(Du)}, {vr(X+4*k)}, {ar(72+4*k)}, {vr(Du)}")
        a, b = vT, vT + 1
        self.xstamp("gu")
        A(f"v_cndmask_b32 v{a}, v{Dg}, v{Dg+1}, s[{sM0}:{sM1}]\nv_mul_f32 v{vT+2}, s{sNLOG2E}, v{a}\nv_exp_f32 v{vT+2}, v{vT+2}\nv_cndmask_b32 v{b}, v{Du}, v{Du+1}, s[{sM0}:{sM1}]")
        A(f"v_add_f32 v{vT+2}, 1.0, v{vT+2}\nv_rcp_f32 v{vT+2}, v{vT+2}\nv_mul_f32 v{a}, v{a}, v{b}\nv_mul_f32 v{a}, v{a}, v{vT+2}")
        A(f"v_cvt_pk_bf16_f32 v{a}, v{a}, v{a}\nds_write_b16 v{cC}, v{a}")
        A("s_waitcnt lgkmcnt(0)\ns_barrier")
        self.xstamp("actbar")
        A(f"ds_read_b128 {vr(X)}, v{cB}\nds_read_b128 {vr(X+4)}, v{cB} offset:64")
        Dd = X + 8
        A("s_waitcnt lgkmcnt(1)")
        for j in range(4): A(f"v_mfma_f32_16x16x32_bf16 {vr(Dd+4*j)}, {vr(X)}, {ar(144+8*j)}, 0")
        A("s_waitcnt lgkmcnt(0)")
        def second(js):
            for j in js: A(f"v_mfma_f32_16x16x32_bf16 {vr(Dd+4*j)}, {vr(X+4)}, {ar(144+8*j+4)}, {vr(Dd+4*j)}")
        def first(js):
            for j in js: A(f"v_mfma_f32_16x16x32_bf16 {vr(Dd+4*j)}, {vr(X)}, {ar(144+8*j)}, 0")
        def put(st, vo):
            d0 = Dd + 16 * st
            if st < 2:
                for j in range(1, 4):
                    for r in range(2): A(f"v_mov_b32_dpp v{d0+r}, v{d0+4*j+r} quad_perm:[0,1,2,3] row_mask:{1<<j:#x} bank_mask:0xf")
            self.tagw([d0], f"s{sFF}")
            A(f"buffer_store_dwordx2 {vr(d0,2)}, v{vo}, {sr(RWS)}, s{RWA+st} offen {ST}")
        second(range(4)); first(range(4, 9)); second(range(4, 6)); put(0, cD); second(range(6, 9)); put(1, cD); put(2, cE)
        self.stamp(6)
        A(f"s_cmp_lg_u32 s{sWAVE}, 0\ns_cbranch_scc1 L_finish")
        R = X
        self.srd(RWQ, sOUT, 2304)
        A(f"v_cmp_gt_u32 vcc, 32, v{vLANE}\nv_add_u32 v{vT}, 4096, v{vVOFF}\nv_mov_b32 v{vT+2}, {OOB:#x}\nv_cndmask_b32 v{cE}, v{vT+2}, v{vT}, vcc\nv_cndmask_b32 v{cG}, 0, -1, vcc")
        A(f"s_mul_i32 s{sA}, s{sI0}, 4608\ns_add_u32 s{sA}, s{sA}, {WS_RP}")
        A(f"v_and_b32 v{vT}, 1, v{vG}\nv_mul_u32_u24 v{vT}, 576, v{vT}\nv_lshrrev_b32 v{vT+1}, 1, v{vG}\nv_add_u32 v{vT}, v{vT}, v{vT+1}\nv_and_b32 v{vT+1}, 3, v{vLANE}\nv_lshl_add_u32 v{vT}, v{vT+1}, 1, v{vT}")
        A(f"s_lshl_b32 s{sB}, s{sI0}, 3\nv_add_u32 v{vT}, s{sB}, v{vT}\nv_lshlrev_b32 v{cA}, 2, v{vT}\nv_add_u32 v{cA}, {L_HB}, v{cA}\nds_read_b32 v{cB}, v{cA}")
        A(f"v_lshlrev_b32 v{vT}, 1, v{vT}\nv_and_b32 v{vT+1}, 12, v{vLANE}\nv_cmp_eq_u32 vcc, 0, v{vT+1}\nv_cndmask_b32 v{cD}, v{vT+2}, v{vT}, vcc")
        if self.c["hint3"]:
            P = X + 32
            notices(WS_F3, "L_rhint"); self.xstamp("rhint")
        if self.c["ackwait"] is not None: A(f"s_waitcnt vmcnt({self.c['ackwait']})")
        done = self.lab("rd")
        A("L_ragain:")
        for i in range(4): A(f"buffer_load_dwordx4 {vr(R+4*i)}, v{vVOFF}, {sr(RWS)}, s{sA} offen offset:{1024*i} {LD}")
        A(f"buffer_load_dwordx4 {vr(R+16)}, v{cE}, {sr(RWS)}, s{sA} offen {LD}")
        A("s_waitcnt vmcnt(0)")
        self.check([R + 2 * i for i in range(8)], f"s{sFF}", vT, masked=([R + 16, R + 18], cG))
        self.retry("L_ragain", done)
        A.label(done)
        self.stamp(7)
        for h in (0, 2): pk(R + h, R + h, R + 4 + h); pk(R + 8 + h, R + 8 + h, R + 12 + h)
        for h in (0, 2): pk(R + h, R + h, R + 16 + h)
        for h in (0, 2): pk(R + h, R + h, R + 8 + h)
        A(f"v_permlane32_swap_b32 v{R}, v{R+2}\nv_permlane32_swap_b32 v{R+1}, v{R+3}")
        pk(R, R, R + 2)
        A(f"v_permlane16_swap_b32 v{R}, v{R+1}\nv_add_f32 v{R}, v{R}, v{R+1}")
        self.allred("v_add_f32", R, vT, ["row_ror:4", "row_ror:8"])
        A(f"s_waitcnt lgkmcnt(0)\nv_add_f32 v{R}, v{cB}, v{R}\nv_cvt_pk_bf16_f32 v{R}, v{R}, v{R}")
        A(f"buffer_store_short v{R}, v{cD}, {sr(RWQ)}, 0 offen")
        A(f"s_cmp_lg_u32 s{sI0}, 0\ns_cbranch_scc1 L_finish")
        if self.c["dbg"]:
            A("s_memtime s[16:17]\ns_memrealtime s[18:19]\ns_waitcnt lgkmcnt(0)\ns_sub_u32 s16, s16, s98\ns_sub_u32 s18, s18, s96\ns_sub_u32 s90, s90, s96\ns_sub_u32 s92, s92, s96")
            A(f"v_mov_b32 v{R+4}, s16\nv_mov_b32 v{R+5}, s18\nv_mov_b32 v{R+6}, s90\nv_mov_b32 v{R+7}, s92\nv_mov_b32 v{vT+3}, 0\ns_mov_b64 exec, 1\nglobal_store_dwordx4 v{vT+3}, {vr(R+4)}, s[100:101]\ns_mov_b64 exec, -1")
        A(f"v_mov_b32 v{vT+3}, {OOB:#x}\nv_cmp_eq_u32 vcc, 0, v{vLANE}\nv_cndmask_b32 v{vT}, v{vT+3}, v{vLANE}, vcc")
        A(f"s_add_u32 s{sA}, s{sEPO}, 1\nv_mov_b32 v{vT+1}, s{sA}\nbuffer_store_dword v{vT+1}, v{vT}, {sr(RWS)}, 0 offen offset:{WS_EPOCH} sc1")
    def finish(self):
        A = self.A
        A("L_finish:")
        if self.c["tilelog"]:
            A(f"s_lshl_b32 s7, s2, 2\ns_add_u32 s7, s7, s{sWAVE}\ns_lshl_b32 s7, s7, 8\ns_add_u32 s7, s7, {WS_LOG}\nv_lshlrev_b32 v{vT}, 2, v{vLANE}")
            A(f"buffer_store_dword v{vLOG}, v{vT}, {sr(RWS)}, s7 offen")
        if self.c["stamps"]:
            A("s_memrealtime s[16:17]\ns_getreg_b32 s18, hwreg(HW_REG_XCC_ID)\ns_waitcnt lgkmcnt(0)")
            B = vU + 100
            A(f"s_lshl_b32 s7, s2, 2\ns_add_u32 s7, s7, s{sWAVE}\ns_lshl_b32 s7, s7, 7\ns_add_u32 s7, s7, {WS_STAMP}")
            A(f"v_mov_b32 v{B}, 0")
            for i in range(8): A(f"v_writelane_b32 v{B}, s{STAMP_REGS[i]}, {i}")
            A(f"v_writelane_b32 v{B}, s16, 8\nv_writelane_b32 v{B}, s18, 9\nv_writelane_b32 v{B}, s{sROLE}, 10\nv_writelane_b32 v{B}, s{sSPIN}, 11")
            A(f"v_writelane_b32 v{B}, s{sMBI}, 12\nv_writelane_b32 v{B}, s{STAMP_REGS[8]}, 13\nv_writelane_b32 v{B}, s{STAMP_REGS[9]}, 14")
            A(f"v_lshlrev_b32 v{B+1}, 2, v{vLANE}\nv_cmp_gt_u32 vcc, 32, v{vLANE}\nv_mov_b32 v{B+2}, {OOB:#x}\nv_cndmask_b32 v{B+1}, v{B+2}, v{B+1}, vcc")
            A(f"buffer_store_dword v{B}, v{B+1}, {sr(RWS)}, s7 offen")
        A("L_end:\ns_endpgm")

    def build(self):
        A = self.A
        self.prologue()
        A(f"s_cmp_eq_u32 s{sROLE}, {ROLE_FFN}\ns_cbranch_scc1 L_stage_ffn\ns_cmp_eq_u32 s{sROLE}, {ROLE_O}\ns_cbranch_scc1 L_stage_o")
        self.q_issue()
        A("L_staged:")
        self.q_finish()
        self.stream()
        self.publish_partial()
        self.tail_o()
        self.tail_ffn()
        A("s_branch L_finish\nL_tail_end:\nL_stage_o:")
        self.stage_o()
        A("s_branch L_staged\nL_stage_ffn:")
        self.stage_ffn()
        A("s_branch L_staged")
        self.finish()
        body = A.finalize()
        tab = make_table(self.c)
        head = open("cdna_kernels/" + NAME + ".s.ref").read().split("; Override launch")[0]
        out = head + f"; @launch grid=(256,1,1) block=(256,1,1) lds={LDS_BYTES}\n"
        out += f'.amdgcn_target "amdgcn-amd-amdhsa--gfx950"\n.text\n.globl {NAME}_kernel\n.p2align 8\n.type {NAME}_kernel,@function\n{NAME}_kernel:\n'
        out += body
        out += ".p2align 4\n.type L_table,@object\nL_table:\n" + "".join(f".long {a:#x}, {b:#x}\n" for a, b in tab) + ".size L_table, 2048\n"
        out += f""".section .rodata,"a"
.p2align 6
.amdhsa_kernel {NAME}_kernel
  .amdhsa_next_free_vgpr 472
  .amdhsa_next_free_sgpr 102
  .amdhsa_accum_offset 256
  .amdhsa_group_segment_fixed_size 0
  .amdhsa_kernarg_size 96
  .amdhsa_user_sgpr_count 2
  .amdhsa_user_sgpr_kernarg_segment_ptr 1
  .amdhsa_system_sgpr_workgroup_id_x 1
  .amdhsa_float_denorm_mode_32 3
.end_amdhsa_kernel
"""
        return out

def generate(**cfg): return Gen(cfg).build()
if __name__ == "__main__":
    cfg = json.loads(sys.argv[2]) if len(sys.argv) > 2 else {}
    open(sys.argv[1], "w").write(generate(**cfg))
```

```python
import re

def regs_of(tok):
    tok = tok.strip()
    if tok.startswith("-"): tok = tok[1:]
    if tok.startswith("abs(") or tok.startswith("|"):
        tok = tok.replace("abs(", "").replace(")", "").replace("|", "")
    m = re.fullmatch(r"([vas])(\d+)", tok)
    if m: return [tok]
    m = re.fullmatch(r"([vas])\[(\d+):(\d+)\]", tok)
    if m: return [f"{m.group(1)}{i}" for i in range(int(m.group(2)), int(m.group(3)) + 1)]
    if tok == "vcc": return ["vcc"]
    if tok in ("vcc_lo", "vcc_hi"): return ["vcc"]
    if tok == "exec": return ["exec"]
    if tok == "m0": return ["m0"]
    return []

TRANS = ("v_exp_f32", "v_log_f32", "v_rcp_f32", "v_rsq_f32", "v_sqrt_f32", "v_sin_f32", "v_cos_f32")
NODEF_S = ("s_cmp", "s_waitcnt", "s_branch", "s_cbranch", "s_barrier", "s_nop", "s_sleep", "s_endpgm", "s_setprio", "s_bitcmp", "s_setpc")

class Ins:
    def __init__(self, text):
        self.text = text
        self.label = None
        t = text.split(";")[0].strip()
        if t.endswith(":"):
            self.label = t[:-1]; self.mn = None; self.defs = []; self.uses = []; self.cls = "label"; return
        if t.startswith("."):
            self.mn = None; self.cls = "dir"; self.defs = []; self.uses = []; return
        parts = t.split(None, 1)
        mn = self.mn = parts[0]
        rest = parts[1] if len(parts) > 1 else ""
        ops = [o.strip() for o in re.split(r",(?![^\[]*\])", rest)] if rest else []
        mods = ""
        if ops:
            last = ops[-1].split(None, 1)
            if len(last) > 1 and not last[0].endswith("("):
                ops[-1] = last[0]; mods = last[1]
        self.ops, self.mods = ops, mods
        R = [regs_of(o) for o in ops]
        flat = lambda xs: [r for x in xs for r in x]
        self.dpp = bool(re.search(r"quad_perm|row_|wave_", mods)) or mn.endswith("_dpp")
        self.sdwa = mn.endswith("_sdwa")
        self.srcC = []; self.srcAB = []; self.store_data = []; self.wide = False; self.lds_dma = False
        if mn.startswith("v_mfma"):
            self.cls = "mfma"; self.defs = R[0]; self.srcAB = R[1] + R[2]; self.srcC = R[3]; self.uses = self.srcAB + self.srcC
        elif mn.startswith("v_"):
            self.cls = "valu"
            if mn.startswith("v_permlane") and "swap" in mn:
                self.defs = R[0] + R[1]; self.uses = R[0] + R[1]
            elif re.match(r"v_(add|sub|subrev|addc|subb)_co", mn):
                self.defs = R[0] + R[1]; self.uses = flat(R[2:])
            else:
                self.defs = R[0]; self.uses = flat(R[1:])
                if mn.startswith(("v_fmac", "v_dot2c", "v_writelane")) or self.sdwa or (self.dpp and ("row_mask:0xf" not in mods or "bank_mask:0xf" not in mods)):
                    self.uses = self.uses + R[0]
            self.dpp_src = R[1] if self.dpp else []
        elif mn.startswith(("buffer_", "global_")):
            self.cls = "vmem"
            self.lds_dma = bool(re.search(r"\blds\b", mods)) or (len(ops) and ops[-1] == "lds") or "load_lds" in mn
            if "load" in mn and not self.lds_dma:
                self.defs = R[0]; self.uses = flat(R[1:])
            elif "atomic" in mn and "sc0" in mods:
                self.defs = R[0]; self.uses = flat(R)
            else:
                self.defs = []; self.uses = flat(R)
                if "store" in mn:
                    self.store_data = R[0] if mn.startswith("buffer_") else R[1]
                    self.wide = mn.endswith(("x3", "x4"))
            if self.lds_dma: self.uses = self.uses + ["m0"]
        elif mn.startswith("ds_"):
            self.cls = "ds"
            if mn.startswith(("ds_read", "ds_bpermute", "ds_permute", "ds_swizzle")) or "_rtn" in mn:
                self.defs = R[0]; self.uses = flat(R[1:])
            else:
                self.defs = []; self.uses = flat(R)
        elif mn.startswith("s_"):
            self.cls = "salu"
            if mn.startswith(NODEF_S):
                self.defs = []; self.uses = flat(R)
            elif "saveexec" in mn:
                self.defs = R[0] + ["exec"]; self.uses = flat(R[1:]) + ["exec"]
            else:
                self.defs = R[0] if R else []; self.uses = flat(R[1:])
        else:
            raise ValueError("unknown instruction: " + text)
        self.trans = mn.replace("_e32", "").replace("_e64", "") in TRANS
    def states(self):
        if self.cls in ("label", "dir"): return 0
        if self.mn == "s_nop": return int(self.ops[0], 0) + 1
        return 1
    def is_branch(self): return self.mn is not None and (self.mn.startswith("s_cbranch") or self.mn == "s_branch")
    def ends_flow(self): return self.mn in ("s_branch", "s_endpgm", "s_setpc_b64")

def isv(r): return r[0] in "va" and r not in ("vcc",)
def iss(r): return (r[0] == "s") or r == "vcc"

def required(p, c):
    n = 0
    pd, cu, cd = set(p.defs), set(c.uses), set(c.defs)
    if p.cls == "valu":
        vd = {r for r in pd if isv(r)}; sd = {r for r in pd if iss(r)}
        if c.cls == "vmem" and sd & cu: n = max(n, 5)
        if c.cls == "valu":
            if c.dpp and vd & set(c.dpp_src): n = max(n, 2)
            if sd & cu: n = max(n, 4 if c.mn.startswith(("v_readlane", "v_writelane")) else 2)
            if c.mn.startswith(("v_readlane", "v_readfirstlane")) and vd & cu: n = max(n, 1)
            if c.mn.startswith("v_permlane") and vd & cu: n = max(n, 2)
            if p.trans and not c.trans and vd & cu: n = max(n, 1)
            if p.sdwa and vd & (cu | cd): n = max(n, 1)
        if c.cls == "mfma":
            if vd & cu: n = max(n, 2)
    if p.cls == "salu" and "m0" in pd and c.cls == "vmem" and c.lds_dma: n = max(n, 1)
    if p.cls == "mfma":
        passes = 8 if "32x32" in p.mn else 4
        full = {4: 8, 8: 12}[passes]; ovl = {4: 6, 8: 10}[passes]; war = {4: 3, 8: 7}[passes]
        if c.cls == "mfma":
            if pd & set(c.srcAB): n = max(n, full)
            if pd & set(c.srcC) and p.defs != c.srcC: n = max(n, ovl)
            if pd & cd and not (pd & set(c.srcC)): n = max(n, ovl)
        elif c.cls in ("valu", "vmem", "ds"):
            if pd & (cu | cd): n = max(n, full)
            if c.cls == "valu" and set(p.srcC) & cd: n = max(n, war)
    if p.cls == "vmem" and p.wide and set(p.store_data) & cd:
        n = max(n, 2 if c.cls in ("valu", "mfma") else 1)
    return n

class Asm:
    def __init__(self): self.ins = []
    def __call__(self, text):
        for line in text.split("\n"):
            line = line.strip()
            if line: self.ins.append(Ins(line))
    def label(self, name): self.ins.append(Ins(name + ":"))
    def finalize(self, maxd=12):
        ins = self.ins
        inserted = 0
        def maps():
            labels = {x.label: i for i, x in enumerate(ins) if x.label}
            jumps = {}
            for i, x in enumerate(ins):
                if x.is_branch(): jumps.setdefault(labels[x.ops[0]], []).append(i)
            return jumps
        def need(i, jumps):
            c = ins[i]; worst = 0
            stack = [(i, 0)]; seen = set()
            while stack:
                j, d = stack.pop()
                preds = []
                if j > 0 and not ins[j-1].ends_flow(): preds.append(j - 1)
                if ins[j].label: preds += jumps.get(j, [])
                for k in preds:
                    if (k, d) in seen: continue
                    seen.add((k, d))
                    p = ins[k]
                    if p.cls not in ("label", "dir"):
                        r = required(p, c)
                        if r > d: worst = max(worst, r - d)
                    nd = d + p.states()
                    if nd < maxd: stack.append((k, nd))
            return worst
        changed = True
        while changed:
            changed = False
            jumps = maps()
            i = 0
            while i < len(ins):
                if ins[i].cls not in ("label", "dir", "salu"):
                    w = need(i, jumps)
                    if w:
                        ins.insert(i, Ins(f"s_nop {w-1}")); inserted += 1; changed = True
                        jumps = maps(); i += 1
                i += 1
        self.inserted = inserted
        return "\n".join((x.text if x.cls in ("label", "dir") else "    " + x.text) for x in ins) + "\n"


def check_provenance(ins, sizes, code_pair=None):
    labels = {x.label: i for i, x in enumerate(ins) if x.label}
    n = len(ins)
    def succ(i):
        x = ins[i]; out = []
        if x.is_branch(): out.append(labels[x.ops[0]])
        if not x.ends_flow() and i + 1 < n: out.append(i + 1)
        return out
    def const(tok):
        try: return int(tok, 0) & 0xffffffff
        except ValueError: return None
    X = frozenset([("x",)])
    def val(st, tok):
        c = const(tok)
        if c is not None: return frozenset([("c", c)])
        return st.get(tok, X)
    def step(st, x):
        if x.cls in ("label", "dir"): return st
        mn = x.mn
        sd = [r for r in x.defs if r[0] == "s" or r in ("m0",)]
        if not sd: return st
        st = dict(st)
        if mn.startswith("s_load_dword") and x.ops[1] == "s[0:1]" and st.get("s0") == frozenset([("ka", 0)]):
            off = int(x.ops[2], 0)
            for k, r in enumerate(sd):
                b = off + 4 * k
                st[r] = frozenset([("lo" if b % 8 == 0 else "hi", b - b % 8)])
        elif mn == "s_mov_b32": st[sd[0]] = val(st, x.ops[1])
        elif mn == "s_getpc_b64": st[sd[0]] = frozenset([("pc", 0)]); st[sd[1]] = frozenset([("pc", 1)])
        elif mn == "s_cselect_b32": st[sd[0]] = val(st, x.ops[1]) | val(st, x.ops[2])
        elif mn == "s_add_u32" and all(k[0] == "lo" for k in val(st, x.ops[1])): st[sd[0]] = frozenset(("lo+", k[1]) for k in val(st, x.ops[1]))
        elif mn == "s_addc_u32" and x.ops[2] == "0" and all(k[0] == "hi" for k in val(st, x.ops[1])): st[sd[0]] = frozenset(("hi+", k[1]) for k in val(st, x.ops[1]))
        else:
            for r in sd: st[r] = X
        return st
    start = {"s0": frozenset([("ka", 0)]), "s1": frozenset([("ka", 1)])}
    state = {0: start}; work = [0]
    while work:
        i = work.pop(); out = step(state[i], ins[i])
        for j in succ(i):
            if j not in state: state[j] = out; work.append(j)
            else:
                old = state[j]; new = {}
                for r in set(old) | set(out):
                    v = old.get(r, X) | out.get(r, X)
                    new[r] = X if len(v) > 4 or ("x",) in v else v
                if new != old: state[j] = new; work.append(j)
    problems = []
    def pair(st, lo, hi, x):
        a, b = val(st, lo), val(st, hi)
        if a == frozenset([("pc", 0)]) and b == frozenset([("pc", 1)]): return "pc"
        if a == frozenset([("ka", 0)]) and b == frozenset([("ka", 1)]): return "ka"
        pa = {k[1] for k in a if k[0] in ("lo", "lo+")}; pb = {k[1] for k in b if k[0] in ("hi", "hi+")}
        plain = {k[0] in ("lo",) for k in a} | {k[0] in ("hi",) for k in b}
        if len(pa) != len(a) or len(pb) != len(b) or pa != pb or len(plain) != 1:
            problems.append(f"bad base {lo},{hi} = {sorted(a)} {sorted(b)} at: {x.text}"); return None
        return pa, plain == {True}
    for i, x in enumerate(ins):
        if i not in state or x.cls in ("label", "dir"): continue
        st = state[i]
        if x.mn.startswith("buffer_"):
            tok = [o for o in x.ops if re.fullmatch(r"s\[\d+:\d+\]", o)][0]
            r = regs_of(tok); p = pair(st, r[0], r[1], x)
            nr, w3 = val(st, r[2]), val(st, r[3])
            if w3 != frozenset([("c", 0x20000)]): problems.append(f"bad word3 at: {x.text}")
            if any(k[0] != "c" for k in nr): problems.append(f"bad size at: {x.text}")
            elif p in ("pc", "ka"): problems.append(f"descriptor on code or kernarg at: {x.text}")
            elif p:
                for ptr in p[0]:
                    if max(k[1] for k in nr) > sizes[ptr]: problems.append(f"size exceeds buffer at: {x.text}")
        elif x.mn.startswith("global_") or x.mn.startswith(("s_load", "s_atomic")):
            tok = [o for o in x.ops[1:] if re.fullmatch(r"s\[\d+:\d+\]", o)]
            if not tok: problems.append(f"no scalar base at: {x.text}"); continue
            r = regs_of(tok[0]); p = pair(st, r[0], r[1], x)
            if p == "pc" and not ("load" in x.mn): problems.append(f"write through code address at: {x.text}")
    return problems
```

```python
import sys, json, struct
from asmlib import Asm, check_provenance

NAME = "sequential_preLN__gqa_block_cached__glu_gated_swiglu__decode"
DEF = dict(D=6, DS=8, WD=8, stamps=False, round_scores=True, counts=None, spin=200000, sleep=0, pf2=False, lastw=False, backoff=0, MT=2, touch=False, qwait=None, late_up=False, tstop=(None, None), late_w2=True, late_o=False, late_half=False, tlb=0, blk=False, xs={}, hint1=False, hint2=True, hint3=False, ackwait=2, overlap=True, stpol='sc1', ldpol='sc1', prefetch_code=True,
           nffn=(60, 60), no=(64, 64, 65), npl=(66, 66, 67), xffn=(60, 60, 59), xpl=(67, 67, 67, 66, 66),
           tilelog=False, kpol='nt', vpol='nt', dbg=False, pad=0, nocomp=0, dyn=True, NB=11, chunks=(3, 2, 1), cstride=256, fake=False)

WS_EPOCH = 0x0
WS_QP = 0x1000
WS_OP = 0x30000
OP_STRIDE = 1280
WS_F2 = 0x24000
WS_F3 = 0x28000
WS_AP = 0x80000
WS_RP = 0x90000
WS_CNT = 0xE4000
WS_STAMP = 0x100000
WS_LOG = 0x140000
WS_SIZE = 0x200000
OOB = 0x80000000
L_R1, L_R2 = 0, 73728
L_QST = L_R2
L_XN = 147456
L_CNT = 149760
L_OW = 150016
L_MLW = 154112
L_XO = 156160; XO_STRIDE = 1056
L_HB = 158272
L_ACT = 162880
L_MB = 163136
NULL_TILE = 0x20000
LDS_BYTES = 163840
ROLE_PLAIN, ROLE_O, ROLE_FFN = 0, 1, 2
LOG2E = 0x3fb8aa3b
SCALE = struct.unpack("<I", struct.pack("<f", 128 ** -0.5))[0]
INV576 = struct.unpack("<I", struct.pack("<f", 1.0 / 576))[0]
EPS = struct.unpack("<I", struct.pack("<f", 1e-5))[0]

def make_table(cfg):
    rows = []
    ffn_i = o_i = y = x = 0
    for g in range(32):
        roles = [ROLE_PLAIN] * 8
        if g % 4 == 3:
            f = [(3 * x + k) % 8 for k in range(3)]; o = []
            cf, co, cp = list(cfg["xffn"]), [], list(cfg["xpl"]); x += 1
        else:
            f = [(2 * y + k) % 8 for k in range(2)]
            o = [(2 * y + 2 + k) % 8 for k in range(3)]
            cf, co, cp = list(cfg["nffn"]), list(cfg["no"]), list(cfg["npl"]); y += 1
        for j in f: roles[j] = ROLE_FFN
        for j in o: roles[j] = ROLE_O
        start = 0
        for j in range(8):
            if roles[j] == ROLE_FFN: n = cf.pop(0); idx = ffn_i; ffn_i += 1
            elif roles[j] == ROLE_O: n = co.pop(0); idx = (o_i // 9) * 16 + o_i % 9; o_i += 1
            else: n = cp.pop(0); idx = 0
            if cfg["dyn"]: start, n = 64 * j, 4 * cfg["NB"] + 3
            assert n >= 8
            assert (n >> 2) % cfg['MT'] == 0
            rows.append((start | (((n >> 2) // cfg['MT']) << 10) | ((n & 3) << 16) | (roles[j] << 24), idx))
            start += n
        assert cfg['dyn'] or start == 512, (g, start)
    assert ffn_i == 72 and o_i == 72
    return rows

def vr(b, n=4): return f"v[{b}:{b+n-1}]" if n > 1 else f"v{b}"
def ar(b, n=4): return f"a[{b}:{b+n-1}]" if n > 1 else f"a{b}"
def sr(b, n=4): return f"s[{b}:{b+n-1}]"

sX, sK, sV, sWQ, sWO, sW1, sW3, sW2, sOUT, sWS = 4, 6, 8, 10, 12, 16, 18, 20, 22, 26
RK, RV, RWS, RWA, RWB, RX, RWQ, RDYN = 28, 32, 36, 40, 44, 48, 52, 84
sWAVE, sTAG, sT0, sT1 = 56, 57, 58, 59
sCUR, sNXT, sTMP, sNB, sNS = 60, 61, 62, 63, 64
sA, sB, sC, sD, sE = 65, 66, 67, 68, 69
sROLE, sI0, sI1, sSPIN = 70, 71, 72, 73
sM0, sM1 = 74, 75
sHI, sSCALE, sLOG2E, sFF = 76, 77, 78, 79
sGRP, sSPLIT, sPC0, sDSO = 80, 81, 82, 88
sEPO = 89
sOPA, sOPS, sNLOG2E, sAP = 15, 0, 1, 44
sTK, sMBI, sCNT, sFK = 3, 14, 24, 84
STAMP_REGS = [90, 92, 94, 96, 98, 100, 6, 8, 10, 26]
vLANE, vKOFF, vVOFF = 1, 2, 3
vMASK = 4; vBQ = 8; vDK = 16; vS0 = 24; vACC = 32
vM, vL, vALPHA, vMC, vMX = 36, 37, 38, 39, 40
vT = 41
vBP = 48; vTAG, vDYN, vG, vQA = 56, 57, 58, 59
vLOG = 60; vRO = 61; vRM = 62; vF1 = 63
vRING = 64
vU = 128
vC = 252

class Gen:
    def __init__(self, cfg):
        self.c = dict(DEF); self.c.update(cfg); self.c['tstop'] = tuple(self.c['tstop'])
        self.A = Asm(); self.nlab = 0; self.nstamp = 0
        self.vS = vS0 if self.c['MT'] == 1 else vU
    def lab(self, p): self.nlab += 1; return f"L_{p}_{self.nlab}"
    def xstamp(self, name):
        if name in self.c["xs"]: self.stamp(self.c["xs"][name], True)
    def stamp(self, i, force=False):
        if self.c["stamps"] and (force or i not in self.c["xs"].values()):
            r = STAMP_REGS[i]; self.A(f"s_memrealtime s[{r}:{r+1}]")
    def tlog(self):
        if not self.c["tilelog"]: return
        A = self.A; skip = self.lab("tl")
        A(f"s_cmp_lg_u32 s{sWAVE}, 1\ns_cbranch_scc1 {skip}\ns_memrealtime s[16:17]\ns_mov_b32 m0, s27\ns_waitcnt lgkmcnt(0)\nv_writelane_b32 v{vLOG}, s16, m0\ns_add_u32 s27, s27, 1\ns_min_u32 s27, s27, 63\n{skip}:")
    def srd(self, r, ptr, size, off=None):
        A = self.A
        if off is None: A(f"s_mov_b32 s{r}, s{ptr}\ns_mov_b32 s{r+1}, s{ptr+1}")
        else: A(f"s_add_u32 s{r}, s{ptr}, s{off}\ns_addc_u32 s{r+1}, s{ptr+1}, 0")
        A(f"s_mov_b32 s{r+2}, {size}\ns_mov_b32 s{r+3}, 0x20000")
    def rnd(self, d, s):
        self.A(f"v_cvt_pk_bf16_f32 v{d}, v{s}, v{s}\nv_and_b32 v{d}, s{sHI}, v{d}")
    def rnd2(self, da, db, a, b, t):
        self.A(f"v_cvt_pk_bf16_f32 v{t}, v{a}, v{b}\nv_lshlrev_b32 v{da}, 16, v{t}\nv_and_b32 v{db}, s{sHI}, v{t}")
    def allred(self, op, v, t, steps):
        A = self.A
        for s in steps:
            if s == "p16": A(f"v_mov_b32 v{t}, v{v}\nv_permlane16_swap_b32 v{v}, v{t}\n{op} v{v}, v{v}, v{t}")
            elif s == "p32": A(f"v_mov_b32 v{t}, v{v}\nv_permlane32_swap_b32 v{v}, v{t}\n{op} v{v}, v{v}, v{t}")
            else: A(f"{op}_dpp v{v}, v{v}, v{v} {s} row_mask:0xf bank_mask:0xf")
    Q1, Q2, HM, RM = "quad_perm:[1,0,3,2]", "quad_perm:[2,3,0,1]", "row_half_mirror", "row_mirror"
    def layernorm(self, vals, steps, t0):
        A = self.A; s, q, t, u = t0, t0 + 1, t0 + 2, t0 + 3
        A(f"v_add_f32 v{s}, v{vals[0]}, v{vals[1]}\nv_add_f32 v{q}, v{vals[2]}, v{vals[3]}")
        for i, v in enumerate(vals[4:]): A(f"v_add_f32 v{(s, q)[i & 1]}, v{(s, q)[i & 1]}, v{v}")
        A(f"v_add_f32 v{s}, v{s}, v{q}")
        self.allred("v_add_f32", s, t, steps)
        A(f"v_mul_f32 v{s}, {INV576:#x}, v{s}")
        for i, v in enumerate(vals):
            A(f"v_sub_f32 v{t}, v{v}, v{s}")
            if i < 2: A(f"v_mul_f32 v{(q, u)[i]}, v{t}, v{t}")
            else: A(f"v_fmac_f32 v{(q, u)[i & 1]}, v{t}, v{t}")
        A(f"v_add_f32 v{q}, v{q}, v{u}")
        self.allred("v_add_f32", q, t, steps)
        A(f"v_mul_f32 v{q}, {INV576:#x}, v{q}")
        self.rnd2(s, q, s, q, t)
        A(f"v_add_f32 v{q}, {EPS:#x}, v{q}"); self.rnd(q, q)
        A(f"v_sqrt_f32 v{q}, v{q}"); self.rnd(q, q)
        A(f"v_rcp_f32 v{q}, v{q}")
        for v in vals: A(f"v_sub_f32 v{v}, v{v}, v{s}")
        for i in range(0, len(vals) - 1, 2): self.rnd2(vals[i], vals[i+1], vals[i], vals[i+1], t)
        if len(vals) & 1: self.rnd(vals[-1], vals[-1])
        for v in vals: A(f"v_mul_f32 v{v}, v{v}, v{q}")
    def tagw(self, regs, mask):
        for r in regs: self.A(f"v_bfi_b32 v{r}, {mask}, v{vTAG}, v{r}")
    def check(self, regs, mask, t, tag=None, masked=None):
        A = self.A; tag = vTAG if tag is None else tag
        regs = list(regs)
        extra = list(masked[0]) if masked else []
        for r in regs + extra: A(f"v_xor_b32 v{r}, v{r}, v{tag}")
        def tree(rs, d):
            if len(rs) == 1: return rs[0]
            if len(rs) == 2: A(f"v_or_b32 v{d}, v{rs[0]}, v{rs[1]}"); rs = []
            else: A(f"v_or3_b32 v{d}, v{rs[0]}, v{rs[1]}, v{rs[2]}"); rs = rs[3:]
            while rs:
                if len(rs) >= 2: A(f"v_or3_b32 v{d}, v{d}, v{rs[0]}, v{rs[1]}"); rs = rs[2:]
                else: A(f"v_or_b32 v{d}, v{d}, v{rs[0]}"); rs = []
            return d
        r0 = tree(regs, t)
        if extra:
            r1 = tree(extra, t + 1)
            A(f"v_and_or_b32 v{t}, v{r1}, v{masked[1]}, v{r0}"); r0 = t
        A(f"v_and_b32 v{t}, {mask}, v{r0}\nv_cmp_ne_u32 vcc, 0, v{t}")
    def retry(self, again, done):
        A = self.A
        A(f"s_cbranch_vccz {done}")
        if self.c["sleep"]: A(f"s_sleep {self.c['sleep']}")
        A(f"s_sub_u32 s{sSPIN}, s{sSPIN}, 1\ns_cbranch_scc0 {again}\ns_mov_b32 s{sSPIN}, 0")
    def dma(self, voff, srd, soff, ldsaddr_sreg_plus, pol="nt"):
        base, imm = ldsaddr_sreg_plus
        self.A(f"s_add_u32 m0, s{base}, {imm}\nbuffer_load_dwordx4 v{voff}, {sr(srd)}, s{soff} offen {pol} lds")

    def prologue(self):
        A = self.A; c = self.c
        A(f"s_cmp_ge_u32 s2, 256\ns_cbranch_scc1 L_end")
        A("s_load_dwordx16 s[4:19], s[0:1], 0\ns_load_dwordx8 s[20:27], s[0:1], 64")
        A(f"s_getpc_b64 s[{sPC0}:{sPC0+1}]\nL_pc:")
        A(f"s_lshl_b32 s{sA}, s2, 3\ns_add_u32 s{sA}, s{sA}, L_table-L_pc")
        A(f"s_load_dwordx2 s[{sT0}:{sT1}], s[{sPC0}:{sPC0+1}], s{sA}")
        self.stamp(0)
        A(f"v_and_b32 v{vLANE}, 63, v0\nv_lshrrev_b32 v{vT}, 6, v0\nv_readfirstlane_b32 s{sWAVE}, v{vT}")
        A(f"s_mov_b32 s{sHI}, 0xffff0000\ns_mov_b32 s{sSCALE}, {SCALE:#x}\ns_mov_b32 s{sLOG2E}, {LOG2E:#x}\ns_mov_b32 s{sFF}, 0xff")
        A(f"s_mov_b32 s{sSPIN}, {c['spin']}\ns_lshr_b32 s{sGRP}, s2, 3\ns_and_b32 s{sSPLIT}, s2, 7")
        A(f"v_lshrrev_b32 v{vG}, 4, v{vLANE}\nv_lshlrev_b32 v{vVOFF}, 4, v{vLANE}")
        A(f"v_lshrrev_b32 v{vT}, 5, v{vLANE}\nv_mul_u32_u24 v{vT}, 1152, v{vT}\nv_and_b32 v{vT+1}, 31, v{vLANE}\nv_mad_u32_u24 v{vU}, v{vT+1}, 12, v{vT}")
        A(f"v_lshrrev_b32 v{vT}, 3, v{vLANE}\nv_and_b32 v{vT+1}, 7, v{vLANE}\nv_lshlrev_b32 v{vT+1}, 4, v{vT+1}\nv_lshl_add_u32 v{vU+1}, v{vT}, 13, v{vT+1}")
        A(f"v_bfe_u32 v{vT}, v{vLANE}, 2, 2\nv_lshlrev_b32 v{vT}, 8, v{vT}\nv_lshl_add_u32 v{vT}, v{vG}, 6, v{vT}\nv_and_b32 v{vT+1}, 3, v{vLANE}\nv_lshl_add_u32 v{vKOFF}, v{vT+1}, 4, v{vT}")
        A(f"s_and_b32 s{sI0}, s2, 63\ns_lshr_b32 s{sI1}, s2, 6")
        A(f"s_mul_i32 s{sB}, s{sI1}, 160\ns_cmp_eq_u32 s{sI1}, 3\ns_cselect_b32 s{sB}, 448, s{sB}")
        A(f"s_lshl_b32 s{sC}, s{sWAVE}, 3\ns_add_u32 s{sC}, s{sC}, s{sB}\ns_lshl_b32 s{sC}, s{sC}, 13\ns_lshl_b32 s{sD}, s{sI0}, 7\ns_add_u32 s{sC}, s{sC}, s{sD}")
        A(f"s_lshl_b32 s{sE}, s{sWAVE}, 10\ns_add_u32 s{sE}, s{sE}, {L_QST}")
        A(f"s_lshl_b32 s{sA}, s{sGRP}, 23")
        A("s_waitcnt lgkmcnt(0)")
        if c["dbg"]:
            A("s_mov_b32 s100, s24\ns_mov_b32 s101, s25\ns_memtime s[98:99]\ns_memrealtime s[96:97]")
        self.srd(RX, sX, 2304)
        self.srd(RWQ, sWQ, 576 * 8192)
        A(f"s_load_dword s{sEPO}, s[{sWS}:{sWS+1}], {WS_EPOCH}")
        for t in range(3): A(f"buffer_load_dwordx3 {vr(vU+4+4*t,3)}, v{vU}, {sr(RX)}, 0 offen offset:{384*t}")
        for j in range(5):
            if j == 4: A(f"s_cmp_lt_u32 s{sI1}, 2\ns_cselect_b32 s{sC}, s{sC}, {OOB:#x}")
            self.dma(vU + 1, RWQ, sC, (sE, 4096 * j))
            if j < 4: A(f"s_add_u32 s{sC}, s{sC}, {32*8192}")
        self.srd(RK, sK, 1 << 23, sA); self.srd(RV, sV, 1 << 23, sA); self.srd(RWS, sWS, WS_SIZE)
        if c["dyn"]:
            A(f"s_lshr_b32 s{sA}, s2, 2\ns_mul_i32 s{sA}, s{sA}, {c['cstride']}\ns_add_u32 s{sA}, s{sA}, {WS_CNT}")
            A(f"s_and_b32 s{sB}, s2, 0x83\ns_or_b32 s{sB}, s{sB}, s{sWAVE}\ns_cmp_eq_u32 s{sB}, 0\ns_cselect_b32 s{sA}, s{sA}, {OOB:#x}")
            A(f"v_mov_b32 v{vT}, 0\nv_cmp_eq_u32 vcc, 0, v{vLANE}\nv_mov_b32 v{vT+1}, {OOB>>1:#x}\nv_cndmask_b32 v{vT+1}, v{vT+1}, v{vT}, vcc")
            A(f"buffer_store_dword v{vT}, v{vT+1}, {sr(RWS)}, s{sA} offen sc1")
            A(f"s_mul_i32 s{sB}, s{sI1}, 160\ns_cmp_eq_u32 s{sI1}, 3\ns_cselect_b32 s{sB}, 448, s{sB}")
            A(f"s_mul_i32 s{sA}, s{sGRP}, {c['cstride']}\ns_add_u32 s{sA}, s{sA}, {WS_CNT}\ns_add_u32 s{sCNT}, s{sWS}, s{sA}\ns_addc_u32 s{sCNT+1}, s{sWS+1}, 0")
            A(f"s_lshl_b32 s{sA}, s{sSPLIT}, 6\ns_add_u32 s{sA}, s{sA}, {4*c['NB']}\nv_add_u32 v{vT}, s{sA}, v{vLANE}\nv_cmp_gt_u32 vcc, 3, v{vLANE}\nv_cndmask_b32 v{vT}, -1, v{vT}, vcc")
            A(f"v_lshlrev_b32 v{vT+1}, 2, v{vLANE}\nv_add_u32 v{vT+1}, {L_MB}, v{vT+1}\nv_mov_b32 v{vT+2}, -1\nds_write_b32 v{vT+1}, v{vT}\nds_write_b32 v{vT+1}, v{vT+2} offset:256\nds_write_b32 v{vT+1}, v{vT+2} offset:448")
            A(f"v_mov_b32 v{vT+1}, {L_CNT}\nv_mov_b32 v{vT+2}, 0\nv_mov_b32 v{vT+3}, 0\nds_write_b64 v{vT+1}, {vr(vT+1+1,2)}".replace(f"{vr(vT+2,2)}", f"{vr(vT+3,2)}").replace(f"v_mov_b32 v{vT+2}, 0", f"v_mov_b32 v{vT+4}, 0"))
        A(f"s_and_b32 s{sCUR}, s{sT0}, 0x3ff\ns_lshl_b32 s{sCUR}, s{sCUR}, 14\ns_lshl_b32 s{sA}, s{sWAVE}, 12\ns_add_u32 s{sCUR}, s{sCUR}, s{sA}")
        A(f"s_bfe_u32 s{sNB}, s{sT0}, 0x6000a\ns_bfe_u32 s{sNS}, s{sT0}, 0x80010\ns_lshr_b32 s{sROLE}, s{sT0}, 24")
        for n in range(8): self.kload_first(n)
        if c["prefetch_code"]:
            A(f"s_lshr_b32 s{sA}, s2, 3\ns_lshl_b32 s{sA}, s{sA}, 2\ns_add_u32 s{sA}, s{sA}, s{sWAVE}\ns_lshl_b32 s{sA}, s{sA}, 10")
            A(f"s_min_u32 s{sA}, s{sA}, L_table-L_pc-1024\nv_add_u32 v{vT}, s{sA}, v{vVOFF}")
            A(f"global_load_dwordx4 {vr(vU+116)}, v{vT}, s[{sPC0}:{sPC0+1}]")
        ny = 8 + (1 if c["prefetch_code"] else 0)
        A(f"v_bfe_u32 v{vT}, v{vLANE}, 3, 1\nv_bfe_u32 v{vT+1}, v{vLANE}, 1, 1\nv_lshl_add_u32 v{vT}, v{vT}, 1, v{vT+1}")
        A(f"v_and_b32 v{vT+1}, 1, v{vLANE}\nv_cmp_eq_u32 vcc, 1, v{vT+1}\nv_mov_b32 v{vT+2}, 0xffff\nv_mov_b32 v{vT+3}, s{sHI}\nv_cndmask_b32 v{vT+2}, v{vT+2}, v{vT+3}, vcc")
        for r in range(4): A(f"v_cmp_eq_u32 vcc, {r}, v{vT}\nv_cndmask_b32 v{vMASK+r}, 0, v{vT+2}, vcc")
        A(f"s_waitcnt vmcnt({5 + ny + (1 if c['dyn'] else 0)})")
        vals = list(range(vU + 16, vU + 34))
        for t in range(3):
            for i in range(3):
                A(f"v_lshlrev_b32 v{vals[6*t+2*i]}, 16, v{vU+4+4*t+i}\nv_and_b32 v{vals[6*t+2*i+1]}, s{sHI}, v{vU+4+4*t+i}")
        self.layernorm(vals, [self.Q1, self.Q2, self.HM, self.RM, "p16"], vU + 36)
        A(f"v_add_u32 v{vU}, {L_XN}, v{vU}")
        for t in range(3):
            for i in range(3):
                A(f"v_cvt_pk_bf16_f32 v{vU+4+4*t+i}, v{vals[6*t+2*i]}, v{vals[6*t+2*i+1]}")
                A(f"ds_write_b32 v{vU}, v{vU+4+4*t+i} offset:{384*t+4*i}")
        A(f"v_and_b32 v{vT}, 1, v{vLANE}\nv_mul_u32_u24 v{vT}, 1152, v{vT}\nv_lshl_add_u32 v{vT}, v{vG}, 4, v{vT}\ns_lshl_b32 s{sB}, s{sB}, 1\ns_add_u32 s{sB}, s{sB}, {L_XN}\nv_add_u32 v{vU+2}, s{sB}, v{vT}")
        A(f"s_cmp_lt_u32 s{sI1}, 2\ns_cselect_b32 s{sB}, 256, 0\nv_add_u32 v{vU+3}, s{sB}, v{vU+2}")
        self.tr_base(vQA, 128)
        A(f"s_lshl_b32 s{sB}, s{sWAVE}, 5\ns_add_u32 s{sB}, s{sB}, {L_QST}\nv_add_u32 v{vU+1}, s{sB}, v{vQA}")
        A(f"s_waitcnt vmcnt({ny}) lgkmcnt(0)\ns_barrier")
        X = vU + 40; Wf = vU + 60; Dq = vU + 80
        for j in range(5):
            if j < 4: A(f"ds_read_b128 {vr(X+4*j)}, v{vU+2} offset:{64*j}")
            else: A(f"ds_read_b128 {vr(X+4*j)}, v{vU+3}")
            A(f"ds_read_b64_tr_b16 {vr(Wf+4*j,2)}, v{vU+1} offset:{4096*j}\nds_read_b64_tr_b16 {vr(Wf+4*j+2,2)}, v{vU+1} offset:{4096*j+512}")
        A(f"s_add_u32 s{sTAG}, s{sEPO}, 1\ns_and_b32 s{sTAG}, s{sTAG}, 0xff\nv_mov_b32 v{vTAG}, s{sTAG}")
        A(f"v_and_b32 v{vT}, 15, v{vLANE}\nv_lshlrev_b32 v{vT+1}, 14, v{vT}\nv_lshl_add_u32 v{vT+1}, v{vG}, 4, v{vT+1}\nv_cmp_gt_u32 vcc, 2, v{vT}\nv_mov_b32 v{vT+2}, {OOB:#x}\nv_cndmask_b32 v{vT+1}, v{vT+2}, v{vT+1}, vcc")
        A(f"s_lshl_b32 s{sB}, s{sI1}, 15\ns_lshl_b32 s{sC}, s{sI0}, 8\ns_add_u32 s{sB}, s{sB}, s{sC}\ns_lshl_b32 s{sC}, s{sWAVE}, 6\ns_add_u32 s{sB}, s{sB}, s{sC}\ns_add_u32 s{sB}, s{sB}, {WS_QP}")
        for j in range(5):
            A(f"s_waitcnt lgkmcnt({3*(4-j)})")
            A(f"v_mfma_f32_16x16x32_bf16 {vr(Dq)}, {vr(Wf+4*j)}, {vr(X+4*j)}, {'0' if j == 0 else vr(Dq)}")
        self.tagw(range(Dq, Dq + 4), 15)
        A(f"buffer_store_dwordx4 {vr(Dq)}, v{vT+1}, {sr(RWS)}, s{sB} offen sc1")
        self.stamp(1)
    def tr_base(self, d, stride, packed=False):
        A = self.A
        if packed:
            A(f"v_bfe_u32 v{vT}, v{vLANE}, 2, 2\nv_lshlrev_b32 v{vT}, 2, v{vT}\nv_add_u32 v{vT}, v{vT}, v{vG}\nv_lshlrev_b32 v{vT}, 1, v{vT}\nv_mul_u32_u24 v{vT}, {stride}, v{vT}\nv_and_b32 v{vT+1}, 3, v{vLANE}\nv_lshl_add_u32 v{d}, v{vT+1}, 3, v{vT}")
            return
        A(f"v_bfe_u32 v{vT}, v{vLANE}, 2, 2\nv_lshl_add_u32 v{vT}, v{vG}, 3, v{vT}\nv_mul_u32_u24 v{vT}, {stride}, v{vT}\nv_and_b32 v{vT+1}, 3, v{vLANE}\nv_lshl_add_u32 v{d}, v{vT+1}, 3, v{vT}")
    def kload_first(self, n):
        A = self.A
        if n % 4 == 0 and n: A(f"s_add_u32 s{sTMP}, s{sCUR}, {16384*(n//4)}")
        so = sCUR if n < 4 else sTMP
        A(f"buffer_load_dwordx4 {vr(vRING+4*n)}, v{vKOFF}, {sr(RK)}, s{so} offen offset:{1024*(n%4)} nt")
    def q_issue(self, with_k=True, wait=None):
        A = self.A
        if with_k:
            for n in range(8, 16): self.kload_first(n)
            A(f"v_bfe_u32 v{vT}, v{vLANE}, 3, 1\nv_lshlrev_b32 v{vT}, 16, v{vT}\nv_bfe_u32 v{vT+1}, v{vLANE}, 2, 1\nv_lshl_add_u32 v{vT}, v{vT+1}, 9, v{vT}")
            A(f"v_lshl_add_u32 v{vT}, v{vG}, 7, v{vT}\nv_and_b32 v{vT+1}, 3, v{vLANE}\nv_lshl_add_u32 v{vU}, v{vT+1}, 5, v{vT}")
            A(f"s_lshl_b32 s{sA}, s{sGRP}, 10\ns_add_u32 s{sA}, s{sA}, {WS_QP}\ns_add_u32 s{sB}, s{sA}, 32768")
        if wait is not None: A(f"s_waitcnt vmcnt({wait})")
        for i, so in enumerate((sA, sB)):
            A(f"buffer_load_dwordx4 {vr(vU+4+8*i)}, v{vU}, {sr(RWS)}, s{so} offen sc1\nbuffer_load_dwordx4 {vr(vU+8+8*i)}, v{vU}, {sr(RWS)}, s{so} offen offset:16 sc1")

    def dma_stream(self, items, state, between=None):
        A = self.A; WD = self.c["WD"]
        for k, (voff, srd, soff_expr, lds) in enumerate(items):
            if state[0] >= WD:
                A(f"s_waitcnt vmcnt({WD-1})"); state[0] = WD - 1
            sreg, add = soff_expr
            A(f"s_add_u32 s{sTMP}, s{sreg}, {add}")
            self.dma(voff, srd, sTMP, (sE, lds)); state[0] += 1
            if between: between(k)
    def tr_reads(self, areg, vaddr, offs):
        return [f"ds_read_b64_tr_b16 {ar(areg+2*i,2)}, v{vaddr} offset:{o}" for i, o in enumerate(offs)]
    def spread(self, lst, n):
        per = -(-len(lst) // n)
        def f(k):
            for x in lst[k*per:(k+1)*per]: self.A(x)
        return f
    def stage_o(self, late=False):
        A = self.A
        if not late: A(f"s_lshr_b32 s{sI0}, s{sT1}, 4\ns_and_b32 s{sI1}, s{sT1}, 15")
        if self.c["late_o"] and not late:
            self.q_issue()
            return
        self.srd(RWA, sWO, 4096 * 1152)
        A(f"v_lshrrev_b32 v{vT}, 3, v{vLANE}\nv_mul_u32_u24 v{vT}, 1152, v{vT}\nv_and_b32 v{vT+1}, 7, v{vLANE}\nv_lshl_add_u32 v{vU+1}, v{vT+1}, 4, v{vT}")
        A(f"s_lshl_b32 s{sC}, s{sI0}, 9\ns_lshl_b32 s{sD}, s{sWAVE}, 3\ns_add_u32 s{sC}, s{sC}, s{sD}\ns_mul_i32 s{sC}, s{sC}, 1152\ns_lshl_b32 s{sD}, s{sI1}, 7\ns_add_u32 s{sC}, s{sC}, s{sD}")
        A(f"s_lshl_b32 s{sE}, s{sWAVE}, 10")
        st = [9] if not late else [-100]
        self.dma_stream([(vU + 1, RWA, (sC, 32 * 1152 * j), L_R1 + 4096 * j) for j in range(16)], st)
        if not late: self.q_issue()
        self.tr_base(vU + 1, 128, packed=True)
        A(f"s_lshl_b32 s{sD}, s{sWAVE}, 5\nv_add_u32 v{vU+1}, s{sD}, v{vU+1}")
        A(f"s_waitcnt vmcnt({0 if late else 12})\ns_barrier")
        for x in self.tr_reads(0, vU + 1, [L_R1 + 4096 * (i // 2) + 128 * (i % 2) for i in range(32)]): A(x)
    def stage_ffn(self):
        A = self.A
        A(f"s_mov_b32 s{sI0}, s{sT1}")
        self.srd(RWA, sW1, 576 * 9216); self.srd(RWB, sW3, 576 * 9216)
        A(f"v_lshrrev_b32 v{vT}, 3, v{vLANE}\nv_mul_u32_u24 v{vT}, 9216, v{vT}\nv_and_b32 v{vT+1}, 7, v{vLANE}\nv_lshl_add_u32 v{vU+1}, v{vT+1}, 4, v{vT}")
        A(f"s_mul_i32 s{sC}, s{sWAVE}, {8*9216}\ns_lshl_b32 s{sD}, s{sI0}, 7\ns_add_u32 s{sC}, s{sC}, s{sD}")
        A(f"s_lshl_b32 s{sE}, s{sWAVE}, 10")
        A(f"s_lshl_b32 s{sD}, s{sWAVE}, 5\nv_add_u32 v{vU+2}, s{sD}, v{vQA}\nv_add_u32 v{vU+3}, {L_R2}, v{vU+2}")
        A("s_barrier")
        G = [(vU + 1, RWA, (sC, 32 * 9216 * j), L_R1 + 4096 * j) for j in range(18)]
        U = [(vU + 1, RWB, (sC, 32 * 9216 * j), L_R2 + 4096 * j) for j in range(18)]
        WD = self.c["WD"]; st = [9]
        def offs(): return [4096 * (i // 2) + 512 * (i % 2) for i in range(36)]
        def rd(areg, va, vb):
            o = offs(); out = []
            for i in range(36):
                if o[i] < 65536 - 4096: out.append(f"ds_read_b64_tr_b16 {ar(areg+2*i,2)}, v{va} offset:{o[i]}")
                else: out.append(f"ds_read_b64_tr_b16 {ar(areg+2*i,2)}, v{vb} offset:{o[i]-32768}")
            return out
        A(f"v_add_u32 v{vU+20}, 32768, v{vU+2}\nv_add_u32 v{vU+21}, 32768, v{vU+3}")
        if self.c["late_up"]:
            self.dma_stream(G, st)
            self.q_issue()
            A("s_waitcnt vmcnt(12)\ns_barrier")
            for x in rd(0, vU + 2, vU + 20): A(x)
            return
        self.dma_stream(G + U[:WD], st)
        A(f"s_waitcnt vmcnt({WD})\ns_barrier"); st[0] = min(st[0], WD)
        self.dma_stream(U[WD:], st, self.spread(rd(0, vU + 2, vU + 20), 18 - WD))
        if self.c["late_w2"]:
            if self.c["touch"]:
                A(f"s_mul_i32 s{sC}, s{sI0}, {64*1152}")
                self.srd(RWA, sW2, 64 * 1152, sC)
                A(f"v_and_b32 v{vT}, 1, v{vLANE}\nv_mul_u32_u24 v{vT}, {64*1152-4}, v{vT}\nbuffer_load_dword v{vU+120}, v{vT}, {sr(RWA)}, 0 offen nt")
                self.srd(RWA, sOUT, 2304)
                A(f"v_mov_b32 v{vT}, 0\nbuffer_load_dword v{vU+121}, v{vT}, {sr(RWA)}, 0 offen")
            if self.c["late_half"]:
                A("s_waitcnt lgkmcnt(0)\ns_barrier")
                A(f"s_mul_i32 s{sC}, s{sI0}, {64*1152}")
                self.srd(RWA, sW2, 32 * 1152, sC)
                self.dma_stream([(vVOFF, RWA, (sE, 4096 * j), L_R1 + 4096 * j) for j in range(9)], st)
            self.q_issue()
            A("s_waitcnt vmcnt(12)\ns_barrier")
            for x in rd(72, vU + 3, vU + 21): A(x)
            if self.c["late_half"]: self.w2_reads(vU + 1, "", (0,))
            return
        A("s_waitcnt lgkmcnt(0)\ns_barrier")
        self.srd(RWA, sW2, 4608 * 1152)
        A(f"s_mul_i32 s{sC}, s{sI0}, {64*1152}\ns_lshl_b32 s{sD}, s{sWAVE}, 10\ns_add_u32 s{sC}, s{sC}, s{sD}")
        W2 = [(vVOFF, RWA, (sC, 4096 * j), L_R1 + 4096 * j) for j in range(18)]
        self.dma_stream(W2[:WD], st)
        A(f"s_waitcnt vmcnt({WD})\ns_barrier"); st[0] = min(st[0], WD)
        self.dma_stream(W2[WD:], st, self.spread(rd(72, vU + 3, vU + 21), 18 - WD))
        self.q_issue()
        self.w2_reads(vU + 1, "s_waitcnt vmcnt(12)\ns_barrier")
    def w2_reads(self, va, sync, steps=(0, 1)):
        A = self.A
        self.tr_base(va, 1152)
        A(f"s_mul_i32 s{sD}, s{sWAVE}, 288\nv_add_u32 v{va}, s{sD}, v{va}")
        A(sync)
        for j in range(9):
            for s in steps:
                for hh in range(2):
                    A(f"ds_read_b64_tr_b16 {ar(144+8*j+4*s+2*hh,2)}, v{va} offset:{L_R1 + 36864*s + 4608*hh + 32*j}")
    def q_finish(self):
        A = self.A
        again, done = self.lab("qa"), self.lab("qd")
        self.tail_consts()
        A("s_waitcnt vmcnt(0)\ns_branch L_qchk\nL_qagain:")
        self.q_issue(with_k=False)
        A("s_waitcnt vmcnt(0)\nL_qchk:")
        R = list(range(vU + 4, vU + 20))
        A(f"v_and_b32 v{vT+2}, 15, v{vTAG}")
        self.check(R, 15, vT, vT + 2)
        self.retry("L_qagain", done)
        A.label(done)
        for i in range(8): A(f"v_add_f32 v{R[i]}, v{R[i]}, v{R[i+8]}")
        for i in range(8): A(f"v_add_f32_dpp v{R[i+8]}, v{R[i]}, v{R[i]} row_ror:8 row_mask:0xf bank_mask:0xf")
        for i in range(4): A(f"v_cvt_pk_bf16_f32 v{R[i]}, v{R[8+2*i]}, v{R[9+2*i]}")
        A(f"v_and_b32 v{vT}, 8, v{vLANE}\nv_cmp_eq_u32 vcc, 0, v{vT}")
        for i in range(4): A(f"v_cndmask_b32 v{vBQ+i}, 0, v{R[i]}, vcc")
        for i in range(4): A(f"v_sub_u32 v{vBQ+4+i}, v{R[i]}, v{vBQ+i}")
        for i in range(4): A(f"v_mov_b32 v{vACC+i}, 0")
        A(f"v_mov_b32 v{vM}, 0xff61b1e6\nv_mov_b32 v{vL}, 0\ns_waitcnt lgkmcnt(0)")
        self.stamp(2)
        if self.c["dbg"]: A("s_memrealtime s[92:93]")
        if self.c["tilelog"] or self.c["blk"]: A(f"s_mov_b32 s27, 0\nv_mov_b32 v{vLOG}, 0")
        self.tlog()

    def extract(self, t):
        d = vDK + 4 * (t & 1); s = self.vS + t
        o = [f"v_mov_b32_dpp v{s}, v{d} quad_perm:[0,0,0,0] row_mask:0xf bank_mask:0xf"]
        for r in range(1, 4): o.append(f"v_add_f32_dpp v{s}, v{d+r}, v{s} quad_perm:[{r},{r},{r},{r}] row_mask:0xf bank_mask:0xf")
        return o
    def roundp(self, t):
        a, b, x = self.vS + t, self.vS + t + 1, vT
        if not self.c["round_scores"]:
            return [f"v_mul_f32 v{a}, s{sSCALE}, v{a}", f"v_mul_f32 v{b}, s{sSCALE}, v{b}"]
        return [f"v_cvt_pk_bf16_f32 v{x}, v{a}, v{b}", f"v_lshlrev_b32 v{a}, 16, v{x}", f"v_and_b32 v{b}, s{sHI}, v{x}",
                f"v_mul_f32 v{a}, s{sSCALE}, v{a}", f"v_mul_f32 v{b}, s{sSCALE}, v{b}",
                f"v_cvt_pk_bf16_f32 v{x}, v{a}, v{b}", f"v_lshlrev_b32 v{a}, 16, v{x}", f"v_and_b32 v{b}, s{sHI}, v{x}"]
    def maxp(self, t):
        return [f"v_max3_f32 v{vMX}, v{vM if t == 0 else vMX}, v{self.vS+t}, v{self.vS+t+1}"]
    def pexp(self, t):
        s = self.vS + t
        return [f"v_fma_f32 v{s}, v{s}, s{sLOG2E}, v{vMC}", f"v_exp_f32 v{s}, v{s}", f"v_add_f32 v{vL}, v{vL}, v{s}", f"v_cvt_pk_bf16_f32 v{s}, v{s}, v{s}"]
    def bprep(self, n):
        p = self.vS + (n >> 1); b = vBP + 4 * (n & 1); o = []
        for r in range(4):
            if (r >> 1) == (n & 1): o.append(f"v_and_b32 v{b+r}, v{p}, v{vMASK+r}")
            else: o.append(f"v_and_b32_dpp v{b+r}, v{p}, v{vMASK+r} row_ror:8 row_mask:0xf bank_mask:0xf")
        return o
    def tile(self, NK, D, issue, first=False, part="both", join=None):
        A0 = self.A; NT = NK // 2; nc = self.c["nocomp"]
        def A(text):
            for x in text.split("\n"):
                if nc >= 1 and x.startswith("v_") and not x.startswith("v_mfma"): continue
                if nc >= 2 and x.startswith("v_mfma"): continue
                A0(x)
        def emit(l):
            for x in l: A(x)
        if part in ("both", "k"):
            for n in range(16 if first else NK):
                if join and n == 16: join()
                if not first: A(f"s_waitcnt vmcnt({D-1})")
                d = vDK + 4 * ((n >> 1) & 1)
                A(f"v_mfma_f32_16x16x32_bf16 {vr(d)}, {vr(vRING+4*(n%16))}, {vr(vBQ+4*(n&1))}, {'0' if n % 2 == 0 else vr(d)}")
                if not (first and n + D < 16): issue(n + D)
                if n >= 3 and n % 2 == 1: emit(self.extract((n - 3) // 2))
                if n >= 6 and n % 4 == 2: emit(self.roundp((n - 6) // 2)); emit(self.maxp((n - 6) // 2))
        if part in ("both", "v"):
            emit(self.extract(NT - 1)); emit(self.roundp(NT - 2)); emit(self.maxp(NT - 2))
            if not nc: self.allred("v_max_f32", vMX, vT, ["row_ror:8", "p16", "p32"])
            A(f"v_sub_f32 v{vALPHA}, v{vM}, v{vMX}\nv_mul_f32 v{vMC}, s{sLOG2E}, v{vMX}\nv_mul_f32 v{vALPHA}, s{sLOG2E}, v{vALPHA}\nv_sub_f32 v{vMC}, 0, v{vMC}")
            A(f"v_exp_f32 v{vALPHA}, v{vALPHA}\nv_mov_b32 v{vM}, v{vMX}\nv_mul_f32 v{vL}, v{vL}, v{vALPHA}")
            emit(self.pexp(0))
            for r in range(4): A(f"v_mul_f32 v{vACC+r}, v{vACC+r}, v{vALPHA}")
            emit(self.bprep(0))
            for n in range(NK):
                A(f"s_waitcnt vmcnt({D-1})")
                A(f"v_mfma_f32_16x16x32_bf16 {vr(vACC)}, {vr(vRING+4*((NK+n)%16))}, {vr(vBP+4*(n&1))}, {vr(vACC)}")
                issue(NK + n + D)
                if n % 2 == 0 and n // 2 + 1 < NT: emit(self.pexp(n // 2 + 1))
                if n + 1 < NK: emit(self.bprep(n + 1))
                for z in range(self.c["pad"]): A(f"v_mov_b32 v{61 + (z & 1)}, v{vLANE}")
    def ld(self, slot, voff, srd, so, imm):
        pol = self.c["kpol"] if srd == RK else self.c["vpol"] if srd == RV else "nt"
        self.A(f"buffer_load_dwordx4 {vr(vRING+4*slot)}, v{voff}, {sr(srd)}, s{so} offen offset:{imm} {pol}")
    def stream(self):
        A = self.A; D, DS = self.c["D"], self.c["DS"]
        assert 4 <= D <= 8 and D <= DS <= 8
        grp = [None]
        MT = self.c["MT"]; NK = 16 * MT
        def big_issue(m):
            if m < 2 * NK:
                j = m % NK; voff, srd = (vKOFF, RK) if m < NK else (vVOFF, RV)
                if j >= 4 and grp[0] != j // 4:
                    A(f"s_add_u32 s{sTMP}, s{sCUR}, {16384*(j//4)}"); grp[0] = j // 4
                self.ld(m % 16, voff, srd, sCUR if j < 4 else sTMP, 1024 * (j % 4))
            else:
                j = m - 2 * NK
                if j < 4: self.ld(j, vKOFF, RK, sNXT, 1024 * j)
                else: self.ld(j, vDYN, RDYN, sDSO, 1024 * (j % 4))
        def top():
            A(f"s_add_u32 s{sNXT}, s{sCUR}, {65536*MT}\ns_add_u32 s{sDSO}, s{sCUR}, {65536*MT+16384}")
            A(f"s_cmp_gt_u32 s{sNB}, 1\ns_cselect_b64 s[{sM0}:{sM1}], -1, 0\ns_cselect_b32 s{RDYN}, s{RK}, s{RV}\ns_cselect_b32 s{RDYN+1}, s{RK+1}, s{RV+1}\ns_cselect_b32 s{sDSO}, s{sDSO}, s{sNXT}")
            A(f"v_cndmask_b32 v{vDYN}, v{vVOFF}, v{vKOFF}, s[{sM0}:{sM1}]")
            A(f"s_add_u32 s{sA}, s{sNB}, s{sNS}\ns_cmp_gt_u32 s{sA}, 1\ns_cselect_b32 s{sNXT}, s{sNXT}, {OOB:#x}\ns_cselect_b32 s{sDSO}, s{sDSO}, {OOB:#x}")
        A(f"s_mov_b32 s{RDYN+2}, {1<<23}\ns_mov_b32 s{RDYN+3}, 0x20000")
        if self.c["tlb"]:
            A(f"v_lshlrev_b32 v{vT}, 20, v{vLANE}\nv_add_u32 v{vT}, {(1<<20) - 128}, v{vT}\nv_min_u32 v{vT}, {OOB>>1:#x}, v{vT}")
            A(f"buffer_load_dword v{vU+120}, v{vT}, {sr(RK)}, 0 offen nt\nbuffer_load_dword v{vU+121}, v{vT}, {sr(RV)}, 0 offen nt")
        top()
        self.tile(NK, D, big_issue, first=True, part="k")
        at_join = grp[0]; grp[0] = None
        A("s_branch L_join\n.p2align 6\nL_big:")
        def join():
            assert at_join == grp[0] or D <= 4
            A("L_join:")
        self.tile(NK, D, big_issue, part="k", join=join)
        if MT == 1: join()
        self.tile(NK, D, big_issue, part="v")
        self.tlog()
        A(f"s_mov_b32 s{sCUR}, s{sNXT}\ns_sub_u32 s{sNB}, s{sNB}, 1\ns_cmp_eq_u32 s{sNB}, 0\ns_cbranch_scc1 L_small_entry")
        top()
        A("s_branch L_big\nL_small_entry:")
        self.stamp(8)
        if self.c["pf2"]:
            A(f"s_lshr_b32 s{sA}, s2, 3\ns_and_b32 s{sA}, s{sA}, 3\ns_lshl_b32 s{sA}, s{sA}, 2\ns_add_u32 s{sA}, s{sA}, s{sWAVE}\ns_lshl_b32 s{sA}, s{sA}, 10")
            A(f"s_add_u32 s{sA}, s{sA}, L_stream_done-L_pc\ns_min_u32 s{sA}, s{sA}, L_tail_end-L_pc-1024\nv_add_u32 v{vT}, s{sA}, v{vVOFF}")
            A(f"global_load_dwordx4 {vr(vU+120)}, v{vT}, s[{sPC0}:{sPC0+1}]")
        A(f"s_cmp_eq_u32 s{sNS}, 0\ns_cbranch_scc1 L_stream_done")
        for j in range(D, DS): self.ld(j, vVOFF, RV, sCUR, 1024 * (j % 4))
        def small_issue(m):
            so = sCUR if m < 8 else sNXT; j = m % 8
            if j < 4: self.ld(j, vKOFF, RK, so, 1024 * j)
            else: self.ld(j, vVOFF, RV, so, 1024 * (j - 4))
        if not self.c["dyn"]:
            A("L_small:")
            A(f"s_add_u32 s{sNXT}, s{sCUR}, 16384\ns_cmp_gt_u32 s{sNS}, 1\ns_cselect_b32 s{sNXT}, s{sNXT}, {OOB:#x}")
            self.tile_small(DS, small_issue)
            A(f"s_mov_b32 s{sCUR}, s{sNXT}\ns_sub_u32 s{sNS}, s{sNS}, 1\ns_cmp_lg_u32 s{sNS}, 0\ns_cbranch_scc1 L_small")
        else:
            base = 4 * self.c["NB"] + 3
            ca, cb, cc = self.c["chunks"]
            assert base + 4 * ca + 2 * cb + cc == 64
            vMB = vBP
            sWR, sPEND = sT0, sNB
            if self.c["tstop"] != (None, None):
                to, tf = [x if x is not None else 0xffff for x in self.c["tstop"]]
                A(f"s_mov_b32 s{sTK}, 0\ns_cmp_eq_u32 s{sROLE}, {ROLE_O}\ns_cselect_b32 s{sT1}, {to}, 0xffff\ns_cmp_eq_u32 s{sROLE}, {ROLE_FFN}\ns_cselect_b32 s{sT1}, {tf}, s{sT1}")
            if self.c["fake"]: A(f"s_mov_b32 s{sFK}, 0")
            A(f"s_mov_b32 s{sMBI}, {L_MB+4}\ns_mov_b32 s{sWR}, {L_MB+12}\ns_mov_b32 s{sPEND}, 0\ns_lshl_b32 s{sB}, s{sWAVE}, 12\nv_min_u32 v{vDYN}, 3, v{vLANE}")
            A(".p2align 6\nL_small:")
            A(f"v_mov_b32 v{vMB}, s{sMBI}\ns_cmp_lg_u32 s{sWAVE}, 0\ns_cbranch_scc1 L_mb_read")
            A(f"s_cmp_lg_u32 s{sPEND}, 1\ns_cbranch_scc1 L_mb_idle")
            if self.c["blk"]:
                A(f"s_add_u32 s27, s27, 0x10000\nL_blk:\ns_getreg_b32 s{sA}, hwreg(HW_REG_IB_STS, 8, 4)\ns_cmp_eq_u32 s{sA}, 0\ns_cbranch_scc1 L_blkd\ns_add_u32 s27, s27, 1\ns_branch L_blk\nL_blkd:")
            A("s_waitcnt lgkmcnt(0)")
            if self.c["fake"]:
                A(f"s_lshl_b32 s{sTK}, s{sEPO+0}, 0" if False else f"s_lshl_b32 s{sTK}, s{sFK}, 3\ns_add_u32 s{sTK}, s{sTK}, s{sSPLIT}\ns_add_u32 s{sFK}, s{sFK}, 1")
            A(f"s_lshr_b32 s{sC}, s{sTK}, 3\ns_add_u32 s{sA}, s{sC}, {base + 3*ca + cb}\ns_mov_b32 s{sD}, 1")
            A(f"s_lshl_b32 s{sE}, s{sC}, 1\ns_add_u32 s{sE}, s{sE}, {base + 2*ca}\ns_cmp_lt_u32 s{sC}, {ca+cb}\ns_cselect_b32 s{sA}, s{sE}, s{sA}\ns_cselect_b32 s{sD}, 2, s{sD}")
            A(f"s_lshl_b32 s{sE}, s{sC}, 2\ns_add_u32 s{sE}, s{sE}, {base}\ns_cmp_lt_u32 s{sC}, {ca}\ns_cselect_b32 s{sA}, s{sE}, s{sA}\ns_cselect_b32 s{sD}, 4, s{sD}")
            A(f"s_and_b32 s{sE}, s{sTK}, 7\ns_lshl_b32 s{sE}, s{sE}, 6\ns_add_u32 s{sA}, s{sA}, s{sE}")
            A(f"s_cmp_lt_u32 s{sC}, {ca+cb+cc}\ns_cselect_b32 s{sA}, s{sA}, {NULL_TILE:#x}\ns_cselect_b32 s{sPEND}, 0, 2")
            A(f"v_add_u32 v{vMB+2}, s{sA}, v{vDYN}\nv_cmp_gt_u32 vcc, s{sD}, v{vDYN}\nv_lshl_add_u32 v{vMB+3}, v{vDYN}, 2, s{sWR}\nv_cndmask_b32 v{vMB+2}, -1, v{vMB+2}, vcc")
            A(f"s_lshl_b32 s{sD}, s{sD}, 2\ns_add_u32 s{sWR}, s{sWR}, s{sD}\nds_write_b32 v{vMB+3}, v{vMB+2}")
            A(f"L_mb_idle:\nds_read_b32 v{vMB+1}, v{vMB}\ns_add_u32 s{sA}, s{sMBI}, 8\ns_cmp_gt_u32 s{sWR}, s{sA}\ns_cbranch_scc1 L_mb_wait\ns_cmp_lg_u32 s{sPEND}, 0\ns_cbranch_scc1 L_mb_wait")
            A(f"s_waitcnt lgkmcnt(0)\ns_mov_b32 s{sPEND}, 1")
            if self.c["tstop"] != (None, None):
                A(f"s_cmp_ge_u32 s{sTK}, s{sT1}\ns_cselect_b32 s{sTK}, 0x10000, 1\ns_cbranch_scc1 L_mb_got")
            else: A(f"s_mov_b32 s{sTK}, 1")
            if self.c["fake"] != 2: A(f"s_atomic_add s{sTK}, s[{sCNT}:{sCNT+1}], 0 glc")
            A("s_branch L_mb_got")
            A(f"L_mb_read:\nds_read_b32 v{vMB+1}, v{vMB}")
            A(f"L_mb_wait:\ns_waitcnt lgkmcnt(0)\nL_mb_got:\nv_readfirstlane_b32 s{sNS}, v{vMB+1}\ns_cmp_lg_u32 s{sNS}, -1\ns_cbranch_scc1 L_mb_ok")
            A(f"s_sub_u32 s{sSPIN}, s{sSPIN}, 1\ns_cbranch_scc0 L_mb_read\ns_mov_b32 s{sNS}, {NULL_TILE:#x}\ns_mov_b32 s{sSPIN}, 0")
            A(f"L_mb_ok:\ns_lshl_b32 s{sNXT}, s{sNS}, 14\ns_add_u32 s{sNXT}, s{sNXT}, s{sB}\ns_add_u32 s{sMBI}, s{sMBI}, 4")
            self.tile_small(DS, small_issue)
            self.tlog()
            A(f"s_mov_b32 s{sCUR}, s{sNXT}\ns_cmp_lt_u32 s{sNS}, 512\ns_cbranch_scc0 L_stream_done\ns_cmp_lt_u32 s{sMBI}, {L_MB + 4*168}\ns_cbranch_scc1 L_small")
        A("L_stream_done:")
    def tile_small(self, D, issue):
        A = self.A
        self.tile(4, D, issue)

    def tail_consts(self):
        A = self.A
        A(f"s_lshl_b32 s{sC}, s{sWAVE}, 10\ns_add_u32 s{sC}, s{sC}, {L_OW}\nv_add_u32 v{vC}, s{sC}, v{vVOFF}")
        A(f"s_lshl_b32 s{sC}, s{sWAVE}, 9\ns_add_u32 s{sC}, s{sC}, {L_MLW}\nv_lshl_add_u32 v{vC+1}, v{vLANE}, 3, s{sC}")
        A(f"v_bfe_u32 v{vT}, v{vLANE}, 2, 1\nv_lshlrev_b32 v{vT+1}, 9, v{vT}\nv_lshl_add_u32 v{vT+1}, v{vG}, 7, v{vT+1}\nv_bfe_u32 v{vT+2}, v{vLANE}, 3, 1\nv_lshl_add_u32 v{vT+1}, v{vT+2}, 6, v{vT+1}")
        A(f"v_and_b32 v{vT+2}, 3, v{vLANE}\nv_lshl_add_u32 v{vC+2}, v{vT+2}, 4, v{vT+1}")
        A(f"v_lshlrev_b32 v{vT}, 4, v{vT}\nv_add_u32 v{vT}, 1024, v{vT}\nv_and_b32 v{vT+1}, 0x3b, v{vLANE}\nv_cmp_eq_u32 vcc, 0, v{vT+1}\nv_mov_b32 v{vT+2}, {OOB:#x}\nv_cndmask_b32 v{vC+3}, v{vT+2}, v{vT}, vcc")
        A(f"v_add_u32 v{vRO}, {L_OW}, v{vVOFF}\nv_lshlrev_b32 v{vRM}, 3, v{vLANE}\nv_add_u32 v{vRM}, {L_MLW}, v{vRM}")
        A(f"s_lshl_b32 s{sC}, s{sWAVE}, 2\ns_cmp_eq_u32 s{sC}, s{sC}\ns_cselect_b32 s{sC}, {'0' if self.c['lastw'] else 's%d' % sC}, 0\ns_add_u32 s{sC}, s{sC}, 1152\nv_mov_b32 v{vT}, s{sC}\nv_cmp_eq_u32 vcc, 0, v{vLANE}\nv_cndmask_b32 v{vF1}, v{vT+2}, v{vT}, vcc")
        A(f"s_mul_i32 s{sOPA}, s2, {OP_STRIDE}\ns_add_u32 s{sOPA}, s{sOPA}, {WS_OP}")
        A(f"s_mov_b32 s{sOPS}, {OP_STRIDE}\ns_mov_b32 s{sNLOG2E}, {LOG2E | 0x80000000:#x}")
    def publish_partial(self):
        A = self.A; ST = self.c["stpol"]
        if self.c["dbg"]: A("s_memrealtime s[90:91]")
        self.stamp(3)
        if self.c["lastw"]:
            one, cnt = vU, vU + 1
            A(f"v_mov_b32 v{one}, 1\nv_mov_b32 v{cnt}, {L_CNT}")
            if self.c["hint1"]: A(f"s_mov_b64 exec, 1\nds_add_rtn_u32 v{vU+2}, v{cnt}, v{one}\ns_mov_b64 exec, -1")
            A(f"ds_write_b128 v{vC}, {vr(vACC)}")
            self.allred("v_add_f32", vL, vT, ["row_ror:8", "p16", "p32"])
            A(f"ds_write_b64 v{vC+1}, {vr(vM,2)}")
            if self.c["hint1"]:
                A(f"s_waitcnt lgkmcnt(2)\nv_readfirstlane_b32 s{sA}, v{vU+2}\ns_cmp_eq_u32 s{sA}, 3\ns_cselect_b32 s{sA}, s{sOPA}, {OOB:#x}")
                A(f"buffer_store_dword v{vTAG}, v{vF1}, {sr(RWS)}, s{sA} offen {ST}")
            A(f"s_mov_b64 exec, 1\nds_add_rtn_u32 v{vU+3}, v{cnt}, v{one} offset:4\ns_mov_b64 exec, -1\ns_waitcnt lgkmcnt(0)\nv_readfirstlane_b32 s{sA}, v{vU+3}")
            self.stamp(9)
            A(f"s_cmp_lg_u32 s{sA}, 3\ns_cbranch_scc1 L_dispatch")
            RO, RM = vRO, vRM
        else:
            if self.c["hint1"]: A(f"buffer_store_dword v{vTAG}, v{vF1}, {sr(RWS)}, s{sOPA} offen {ST}")
            A(f"ds_write_b128 v{vC}, {vr(vACC)}")
            self.allred("v_add_f32", vL, vT, ["row_ror:8", "p16", "p32"])
            A(f"ds_write_b64 v{vC+1}, {vr(vM,2)}")
            A("s_waitcnt lgkmcnt(0)\ns_barrier")
            self.stamp(9)
            A(f"s_cmp_lg_u32 s{sWAVE}, 0\ns_cbranch_scc1 L_dispatch")
            RO, RM = vC, vC + 1
        O = vU + 4; ML = vU + 20; F = vU + 28; R = vU + 32; G = vU + 36
        for w in range(4): A(f"ds_read_b64 {vr(ML+2*w,2)}, v{RM} offset:{512*w}")
        for w in range(4): A(f"ds_read_b128 {vr(O+4*w)}, v{RO} offset:{1024*w}")
        A("s_waitcnt lgkmcnt(4)")
        A(f"v_max3_f32 v{G}, v{ML}, v{ML+2}, v{ML+4}\nv_max_f32 v{G}, v{G}, v{ML+6}\nv_mul_f32 v{G+2}, s{sLOG2E}, v{G}")
        for w in range(4): A(f"v_fma_f32 v{F+w}, v{ML+2*w}, s{sLOG2E}, -v{G+2}")
        for w in range(4): A(f"v_exp_f32 v{F+w}, v{F+w}")
        A(f"s_waitcnt lgkmcnt(3)\nv_pk_mul_f32 {vr(R,2)}, {vr(O,2)}, {vr(F,2)} op_sel_hi:[1,0]\nv_pk_mul_f32 {vr(R+2,2)}, {vr(O+2,2)}, {vr(F,2)} op_sel_hi:[1,0]")
        for w in range(1, 4):
            fb = F + (w & ~1); sel = "op_sel:[0,1,0] op_sel_hi:[1,1,1]" if w & 1 else "op_sel_hi:[1,0,1]"
            A(f"s_waitcnt lgkmcnt({3-w})")
            for h in (0, 2): A(f"v_pk_fma_f32 {vr(R+h,2)}, {vr(O+4*w+h,2)}, {vr(fb,2)}, {vr(R+h,2)} {sel}")
        self.tagw([R], f"s{sFF}")
        A(f"buffer_store_dwordx4 {vr(R)}, v{vC+2}, {sr(RWS)}, s{sOPA} offen {ST}")
        A(f"v_mul_f32 v{G+1}, v{F}, v{ML+1}")
        for w in range(1, 4): A(f"v_fmac_f32 v{G+1}, v{F+w}, v{ML+2*w+1}")
        self.tagw([G, G + 1], f"s{sFF}")
        A(f"v_mov_b32 v{G+2}, v{G}\nv_mov_b32 v{G+3}, v{G+1}")
        A(f"buffer_store_dwordx4 {vr(G)}, v{vC+3}, {sr(RWS)}, s{sOPA} offen {ST}")
        A("L_dispatch:")
        self.stamp(4)
        A(f"s_cmp_eq_u32 s{sROLE}, {ROLE_FFN}\ns_cbranch_scc1 L_tail_ffn\ns_cmp_eq_u32 s{sROLE}, {ROLE_PLAIN}\ns_cbranch_scc1 L_finish")
    def tail_o(self):
        A = self.A; ST = self.c["stpol"]; LD = self.c["ldpol"]
        O = vU + 8; ML = vU + 40; X = vU + 48; Dq = vU + 44
        if self.c["late_o"]: self.stage_o(late=True)
        A(f"v_lshrrev_b32 v{vT}, 5, v{vLANE}\nv_mul_u32_u24 v{vT+3}, {128*OP_STRIDE}, v{vT}\nv_and_b32 v{vT+1}, 31, v{vLANE}\nv_lshl_add_u32 v{vU}, v{vT+1}, 4, v{vT+3}")
        A(f"v_and_b32 v{vT+2}, 7, v{vLANE}\nv_mad_u32_u24 v{vU+1}, v{vT+2}, s{sOPS}, v{vT+3}")
        A(f"v_mul_u32_u24 v{vT}, {XO_STRIDE}, v{vT}\nv_lshl_add_u32 v{vT}, v{vT+1}, 3, v{vT}")
        A(f"s_lshl_b32 s{sA}, s{sWAVE}, 8\ns_add_u32 s{sA}, s{sA}, {L_XO}\nv_add_u32 v{vU+2}, s{sA}, v{vT}")
        A(f"v_and_b32 v{vT}, 1, v{vLANE}\nv_mul_u32_u24 v{vT}, {XO_STRIDE}, v{vT}\nv_lshl_add_u32 v{vT}, v{vG}, 4, v{vT}\nv_add_u32 v{vU+3}, {L_XO}, v{vT}")
        A(f"v_and_b32 v{vT}, 15, v{vLANE}\nv_mul_u32_u24 v{vT+1}, 2304, v{vT}\nv_lshl_add_u32 v{vT+1}, v{vG}, 4, v{vT+1}\nv_cmp_gt_u32 vcc, 2, v{vT}\nv_mov_b32 v{vT+2}, {OOB:#x}\nv_cndmask_b32 v{vU+4}, v{vT+2}, v{vT+1}, vcc")
        A(f"s_lshl_b32 s{sA}, s{sI0}, 1\ns_lshr_b32 s{sB}, s{sWAVE}, 1\ns_add_u32 s{sA}, s{sA}, s{sB}\ns_and_b32 s{sB}, s{sWAVE}, 1")
        A(f"s_mul_i32 s{sC}, s{sA}, {8*OP_STRIDE}\ns_add_u32 s{sC}, s{sC}, {WS_OP}\ns_lshl_b32 s{sD}, s{sB}, 4\ns_add_u32 s{sA}, s{sC}, s{sD}\ns_lshl_b32 s{sD}, s{sB}, 9\ns_add_u32 s{sC}, s{sC}, s{sD}")
        A(f"s_add_u32 s{sD}, s{sC}, {3*OP_STRIDE}\ns_add_u32 s{sE}, s{sC}, {6*OP_STRIDE}\ns_lshl_b32 s{sNXT}, s{sB}, 4\ns_sub_u32 s{sNXT}, s{sA}, s{sNXT}")
        A(f"s_mul_i32 s{sB}, s{sI0}, 4608\ns_lshl_b32 s{sTMP}, s{sI1}, 8\ns_add_u32 s{sB}, s{sB}, s{sTMP}\ns_lshl_b32 s{sTMP}, s{sWAVE}, 6\ns_add_u32 s{sB}, s{sB}, s{sTMP}\ns_add_u32 s{sB}, s{sB}, {WS_AP}")
        A(f"s_lshl_b32 s{sTMP}, s{sI0}, 3\ns_add_u32 s{sTMP}, s{sTMP}, s{sI0}\ns_add_u32 s{sTMP}, s{sTMP}, s{sI1}\ns_lshl_b32 s{sTMP}, s{sTMP}, 7\ns_add_u32 s{sTMP}, s{sTMP}, {WS_F2}")
        A(f"v_or_b32 v{vT}, s{sWAVE}, v{vLANE}\nv_cmp_eq_u32 vcc, 0, v{vT}\nv_cndmask_b32 v{vU+5}, v{vT+2}, v{vT}, vcc")
        if self.c["hint1"]:
            hd = self.lab("oh")
            A(f"L_ohint:\nbuffer_load_dwordx4 {vr(ML)}, v{vU+1}, {sr(RWS)}, s{sA} offen offset:1152 {LD}\ns_waitcnt vmcnt(0)".replace(f"s{sA} offen offset:1152", f"s{sNXT} offen offset:1152"))
            self.check(list(range(ML, ML + (1 if self.c["lastw"] else 4))), f"s{sFF}", vT)
            self.retry("L_ohint", hd); A.label(hd)
            self.xstamp("ohint")
        done = self.lab("od")
        Mx, Wt, Ls = vT + 2, vT + 3, vT + 4
        A("L_oagain:")
        A(f"buffer_load_dwordx4 {vr(ML)}, v{vU+1}, {sr(RWS)}, s{sA} offen offset:1024 {LD}")
        for s in range(8): A(f"buffer_load_dwordx4 {vr(O+4*s)}, v{vU}, {sr(RWS)}, s{(sC, sD, sE)[s // 3]} offen offset:{OP_STRIDE*(s%3)} {LD}")
        if self.c["hint2"] == 2: A(f"buffer_store_dword v{vTAG}, v{vU+5}, {sr(RWS)}, s{sTMP} offen {ST}")
        ex = 1 if self.c["hint2"] == 2 else 0
        A(f"s_waitcnt vmcnt({8+ex})")
        for r in range(4): A(f"v_xor_b32 v{ML+r}, v{ML+r}, v{vTAG}")
        A(f"v_max_f32_dpp v{Mx}, v{ML}, v{ML} {self.Q1} row_mask:0xf bank_mask:0xf\nv_or3_b32 v{vT}, v{ML}, v{ML+1}, v{ML+2}\nv_or_b32 v{vT}, v{vT}, v{ML+3}")
        self.allred("v_max_f32", Mx, vT + 1, [self.Q2, self.HM])
        A(f"v_sub_f32 v{Wt}, v{ML}, v{Mx}\nv_mul_f32 v{Wt}, s{sLOG2E}, v{Wt}\nv_exp_f32 v{Wt}, v{Wt}\nv_mul_f32 v{Ls}, v{Wt}, v{ML+1}")
        for x in (self.Q1, self.Q2, self.HM): A(f"v_add_f32_dpp v{Ls}, v{Ls}, v{Ls} {x} row_mask:0xf bank_mask:0xf")
        A(f"v_rcp_f32 v{Ls}, v{Ls}")
        for s in range(8):
            A(f"s_waitcnt vmcnt({7-s+ex})\nv_xor_b32 v{O+4*s}, v{O+4*s}, v{vTAG}")
            for r in (1, 2, 3, 0):
                op = "v_mul_f32_dpp" if s == 0 else "v_fmac_f32_dpp"
                A(f"{op} v{Dq+r}, v{Wt}, v{O+4*s+r} row_newbcast:{s} row_mask:0xf bank_mask:0xf")
            A(f"v_or_b32 v{vT}, v{vT}, v{O+4*s}")
        A(f"v_and_b32 v{vT}, s{sFF}, v{vT}\nv_cmp_ne_u32 vcc, 0, v{vT}")
        self.retry("L_oagain", done)
        A.label(done)
        self.stamp(5)
        if self.c["hint2"] == 1: A(f"buffer_store_dword v{vTAG}, v{vU+5}, {sr(RWS)}, s{sTMP} offen {ST}")
        for r in range(4): A(f"v_mul_f32 v{Dq+r}, v{Dq+r}, v{Ls}")
        A(f"v_cvt_pk_bf16_f32 v{Dq}, v{Dq}, v{Dq+1}\nv_cvt_pk_bf16_f32 v{Dq+1}, v{Dq+2}, v{Dq+3}\nds_write_b64 v{vU+2}, {vr(Dq,2)}")
        A("s_waitcnt lgkmcnt(0)\ns_barrier")
        self.xstamp("xobar")
        for s in range(16): A(f"ds_read_b128 {vr(X+4*s)}, v{vU+3} offset:{64*s}")
        for s in range(16):
            A(f"s_waitcnt lgkmcnt({15-s})")
            A(f"v_mfma_f32_16x16x32_bf16 {vr(Dq)}, {ar(4*s)}, {vr(X+4*s)}, {'0' if s == 0 else vr(Dq)}")
        self.tagw([Dq], f"s{sFF}")
        A(f"buffer_store_dwordx4 {vr(Dq)}, v{vU+4}, {sr(RWS)}, s{sB} offen {ST}")
        self.stamp(6)
        A("s_branch L_finish")
    def tail_ffn(self):
        A = self.A; ST = self.c["stpol"]; LD = self.c["ldpol"]
        A("L_tail_ffn:")
        P = vU + 16; XV = vU + 4; X = vU + 28; Dg = vU + 100; Du = vU + 104
        cA, cB, cC, cD, cE, cF, cG, cH = range(vU + 112, vU + 120)
        pr = lambda pg, t: P + 12 * pg + 4 * t
        self.srd(RX, sX, 2304)
        A(f"v_cmp_gt_u32 vcc, 16, v{vLANE}\nv_lshlrev_b32 v{vT}, 3, v{vLANE}\nv_add_u32 v{vT+1}, 1024, v{vT}\nv_mov_b32 v{vT+2}, {OOB:#x}\nv_cndmask_b32 v{vT+1}, v{vT+2}, v{vT+1}, vcc\ns_mul_i32 s{sA}, s{sWAVE}, 1152")
        A(f"buffer_load_dwordx2 {vr(P,2)}, v{vT}, {sr(RX)}, s{sA} offen\nbuffer_load_dwordx2 {vr(P+2,2)}, v{vT}, {sr(RX)}, s{sA} offen offset:512\nbuffer_load_dwordx2 {vr(P+4,2)}, v{vT+1}, {sr(RX)}, s{sA} offen")
        if self.c["late_up"]:
            self.srd(RWA, sW3, 576 * 9216)
            A(f"v_lshrrev_b32 v{vT}, 3, v{vLANE}\nv_mul_u32_u24 v{vT}, 9216, v{vT}\nv_and_b32 v{vT+1}, 7, v{vLANE}\nv_lshl_add_u32 v{vU+1}, v{vT+1}, 4, v{vT}")
            A(f"s_mul_i32 s{sC}, s{sWAVE}, {8*9216}\ns_lshl_b32 s{sD}, s{sI0}, 7\ns_add_u32 s{sC}, s{sC}, s{sD}\ns_lshl_b32 s{sE}, s{sWAVE}, 10")
            for j in range(18):
                A(f"s_add_u32 s{sTMP}, s{sC}, {32*9216*j}")
                self.dma(vU + 1, RWA, sTMP, (sE, L_R2 + 4096 * j))
        if self.c["late_w2"]:
            A(f"s_mul_i32 s{sC}, s{sI0}, {64*1152}")
            self.srd(RWB, sW2, 64 * 1152, sC)
            A(f"s_lshl_b32 s{sE}, s{sWAVE}, 10")
            for j in range(9 if self.c["late_half"] else 0, 18):
                A(f"s_add_u32 s{sTMP}, s{sE}, {4096*j}")
                self.dma(vVOFF, RWB, sTMP, (sE, L_R1 + 4096 * j))
        A(f"v_and_b32 v{vT}, 1, v{vLANE}\nv_mul_u32_u24 v{vT+1}, 1152, v{vT}\nv_lshl_add_u32 v{vT+1}, v{vG}, 4, v{vT+1}\nv_add_u32 v{cA}, {L_XN}, v{vT+1}")
        A(f"v_lshlrev_b32 v{vT+1}, 7, v{vT}\nv_lshl_add_u32 v{vT+1}, v{vG}, 4, v{vT+1}\nv_add_u32 v{cB}, {L_ACT}, v{vT+1}")
        A(f"v_and_b32 v{vT}, 1, v{vG}\nv_lshlrev_b32 v{vT}, 7, v{vT}\nv_and_b32 v{vT+1}, 15, v{vLANE}\nv_lshl_add_u32 v{vT}, v{vT+1}, 1, v{vT}")
        A(f"s_lshl_b32 s{sA}, s{sWAVE}, 5\ns_add_u32 s{sA}, s{sA}, {L_ACT}\nv_add_u32 v{cC}, s{sA}, v{vT}")
        A(f"v_lshrrev_b32 v{vT}, 3, v{vLANE}\nv_mul_u32_u24 v{vT}, 4608, v{vT}\nv_and_b32 v{vT+1}, 7, v{vLANE}\nv_lshl_add_u32 v{cD}, v{vT+1}, 3, v{vT}")
        A(f"v_cmp_gt_u32 vcc, 16, v{vLANE}\nv_mov_b32 v{vT+2}, {OOB:#x}\nv_cndmask_b32 v{cE}, v{vT+2}, v{cD}, vcc")
        A(f"v_or_b32 v{vT}, s{sWAVE}, v{vLANE}\nv_cmp_eq_u32 s[{sM0}:{sM1}], 0, v{vT}\nv_cndmask_b32 v{cH}, v{vT+2}, v{vT}, s[{sM0}:{sM1}]")
        A(f"v_and_b32 v{vT}, 16, v{vLANE}\nv_cmp_ne_u32 s[{sM0}:{sM1}], 0, v{vT}")
        A(f"s_mul_i32 s{sA}, s{sWAVE}, {18*4608}\ns_lshl_b32 s{sB}, s{sI0}, 6\ns_add_u32 s{sA}, s{sA}, s{sB}\ns_add_u32 s{RWA}, s{sA}, {WS_RP}\ns_add_u32 s{RWA+1}, s{RWA}, {8*4608}\ns_add_u32 s{RWA+2}, s{RWA}, {16*4608}")
        if self.c["late_w2"]:
            A(f"v_cndmask_b32 v{cG}, 0, -1, vcc")
            if self.c["late_up"]:
                A(f"s_lshl_b32 s{sD}, s{sWAVE}, 5\ns_add_u32 s{sD}, s{sD}, {L_R2}\nv_add_u32 v{vU+2}, s{sD}, v{vQA}\nv_add_u32 v{vU+3}, 32768, v{vU+2}\ns_waitcnt vmcnt(18)\ns_barrier")
                for i in range(36):
                    o = 4096 * (i // 2) + 512 * (i % 2)
                    A(f"ds_read_b64_tr_b16 {ar(72+2*i,2)}, v{vU+2} offset:{o}" if o < 61440 else f"ds_read_b64_tr_b16 {ar(72+2*i,2)}, v{vU+3} offset:{o-32768}")
            self.w2_reads(vU, "s_waitcnt vmcnt(0)\ns_barrier", (1,) if self.c["late_half"] else (0, 1))
            self.xstamp("w2rd")
            A(f"v_cmp_ne_u32 vcc, 0, v{cG}\nv_mov_b32 v{vT+2}, {OOB:#x}")
        A(f"s_cmp_ge_u32 s{sWAVE}, 2\ns_cbranch_scc1 L_ffn_b1")
        A(f"v_lshlrev_b32 v{vT}, 3, v{vLANE}\ns_mul_i32 s{sA}, s{sWAVE}, 1152")
        A(f"v_add_u32 v{vT+3}, 2048, v{vVOFF}\nv_cndmask_b32 v{cF}, v{vT+2}, v{vT+3}, vcc\nv_cndmask_b32 v{cG}, 0, -1, vcc")
        A(f"s_add_u32 s{sA}, s{sA}, {L_XN}\nv_add_u32 v{vU}, s{sA}, v{vT}\nv_add_u32 v{vT+1}, 1024, v{vU}\nv_mov_b32 v{vT+3}, {L_OW}\nv_cndmask_b32 v{vU+1}, v{vT+3}, v{vT+1}, vcc")
        A(f"s_mul_i32 s{sA}, s{sWAVE}, 2304\ns_add_u32 s{sB}, s{sA}, {WS_AP}\ns_add_u32 s{sA}, s{sA}, {L_HB}\nv_add_u32 v{vU+2}, s{sA}, v{vVOFF}\nv_add_u32 v{vT+1}, 2048, v{vU+2}\nv_cndmask_b32 v{vU+3}, v{vT+3}, v{vT+1}, vcc")
        for pg in range(8): A(f"s_add_u32 s{sAP+pg}, s{sB}, {4608*pg}")
        A("s_waitcnt vmcnt(0)")
        for i in range(6): A(f"v_lshlrev_b32 v{XV+2*i}, 16, v{P+i}\nv_and_b32 v{XV+2*i+1}, s{sHI}, v{P+i}")
        pk = lambda d, x, y: A(f"v_pk_add_f32 {vr(d,2)}, {vr(x,2)}, {vr(y,2)}")
        def notices(base, again):
            hd = self.lab("nh")
            A(f"v_lshlrev_b32 v{P}, 7, v{vLANE}\nv_add_u32 v{P+1}, 8192, v{P}\nv_cmp_gt_u32 vcc, 8, v{vLANE}\nv_cndmask_b32 v{P+1}, v{P}, v{P+1}, vcc\ns_mov_b32 s{sTMP}, {base}")
            A(f"{again}:\nbuffer_load_dword v{P+2}, v{P}, {sr(RWS)}, s{sTMP} offen {LD}\nbuffer_load_dword v{P+3}, v{P+1}, {sr(RWS)}, s{sTMP} offen {LD}\ns_waitcnt vmcnt(0)")
            self.check([P + 2, P + 3], f"s{sFF}", vT)
            self.retry(again, hd); A.label(hd)
        if self.c["hint2"]: notices(WS_F2, "L_fhint"); self.xstamp("fhint")
        done = self.lab("fd")
        H = vU + 112 - 12 - 0
        H = P + 96 - 12
        A("L_fagain:")
        for pg in range(8):
            for t in range(3):
                if t < 2: A(f"buffer_load_dwordx4 {vr(pr(pg,t))}, v{vVOFF}, {sr(RWS)}, s{sAP+pg} offen offset:{1024*t} {LD}")
                else: A(f"buffer_load_dwordx4 {vr(pr(pg,t))}, v{cF}, {sr(RWS)}, s{sAP+pg} offen {LD}")
        for pg in range(8):
            A(f"s_waitcnt vmcnt({21-3*pg})")
            for t in range(3): A(f"v_xor_b32 v{pr(pg,t)}, v{pr(pg,t)}, v{vTAG}")
            if pg == 0: A(f"v_or_b32 v{vT}, v{pr(0,0)}, v{pr(0,1)}\nv_mov_b32 v{vT+1}, v{pr(0,2)}")
            else: A(f"v_or3_b32 v{vT}, v{vT}, v{pr(pg,0)}, v{pr(pg,1)}\nv_or_b32 v{vT+1}, v{vT+1}, v{pr(pg,2)}")
            for i in range(0, 12, 2): pk(P + i, XV + i if pg == 0 else P + i, P + i if pg == 0 else P + 12 * pg + i)
        A(f"v_and_or_b32 v{vT}, v{vT+1}, v{cG}, v{vT}\nv_and_b32 v{vT}, s{sFF}, v{vT}\nv_cmp_ne_u32 vcc, 0, v{vT}")
        self.retry("L_fagain", done)
        A.label(done)
        self.stamp(5)
        XV = P; P = P + 12
        S, Q = P, P + 2
        pk(S, XV, XV + 2); A(f"v_pk_mul_f32 {vr(Q,2)}, {vr(XV,2)}, {vr(XV,2)}")
        for i in range(2, 12, 2):
            if i > 2: pk(S, S, XV + i)
            A(f"v_pk_fma_f32 {vr(Q,2)}, {vr(XV+i,2)}, {vr(XV+i,2)}, {vr(Q,2)}")
        A(f"v_add_f32 v{S}, v{S}, v{S+1}\nv_add_f32 v{Q}, v{Q}, v{Q+1}")
        for st in (self.Q1, self.Q2, self.HM, self.RM):
            for v in (S, Q): A(f"v_add_f32_dpp v{v}, v{v}, v{v} {st} row_mask:0xf bank_mask:0xf")
        A(f"v_permlane16_swap_b32 v{S}, v{Q}\nv_add_f32 v{S}, v{S}, v{Q}\nv_mov_b32 v{Q}, v{S}\nv_permlane32_swap_b32 v{S}, v{Q}\nv_add_f32 v{S}, v{S}, v{Q}")
        A(f"v_mul_f32 v{S}, {INV576:#x}, v{S}\nv_mov_b32 v{Q}, v{S}\nv_permlane16_swap_b32 v{S}, v{Q}")
        A(f"v_fma_f32 v{Q}, -v{S}, v{S}, v{Q}\nv_max_f32 v{Q}, 0, v{Q}\nv_add_f32 v{Q}, {EPS:#x}, v{Q}\nv_rsq_f32 v{Q}, v{Q}\nv_mul_f32 v{S}, -v{S}, v{Q}")
        for t in range(3):
            y = P + 4 + 4 * t
            for h in (0, 2): A(f"v_pk_fma_f32 {vr(y+h,2)}, {vr(XV+4*t+h,2)}, {vr(Q,2)}, {vr(S,2)} op_sel_hi:[1,0,0]")
            A(f"v_cvt_pk_bf16_f32 v{y}, v{y}, v{y+1}\nv_cvt_pk_bf16_f32 v{y+1}, v{y+2}, v{y+3}")
            A(f"ds_write_b64 v{vU}, {vr(y,2)} offset:{512*t}" if t < 2 else f"ds_write_b64 v{vU+1}, {vr(y,2)}")
        A("s_waitcnt lgkmcnt(0)\ns_barrier")
        if self.c["hint3"]:
            A(f"s_lshl_b32 s{sTMP}, s{sI0}, 7\ns_add_u32 s{sTMP}, s{sTMP}, {WS_F3}\nbuffer_store_dword v{vTAG}, v{cH}, {sr(RWS)}, s{sTMP} offen {ST}")
        A(f"ds_write_b128 v{vU+2}, {vr(XV)}\nds_write_b128 v{vU+2}, {vr(XV+4)} offset:1024\nds_write_b128 v{vU+3}, {vr(XV+8)}")
        A("s_branch L_ffn_b1d\nL_ffn_b1:\ns_barrier\nL_ffn_b1d:")
        self.xstamp("xnbar")
        NPRE = 8
        for s in range(18):
            A(f"ds_read_b128 {vr(X+4*s)}, v{cA} offset:{64*s}")
            if s >= NPRE:
                k = s - NPRE
                A(f"s_waitcnt lgkmcnt({NPRE})")
                A(f"v_mfma_f32_16x16x32_bf16 {vr(Dg)}, {vr(X+4*k)}, {ar(4*k)}, {'0' if k == 0 else vr(Dg)}")
                A(f"v_mfma_f32_16x16x32_bf16 {vr(Du)}, {vr(X+4*k)}, {ar(72+4*k)}, {'0' if k == 0 else vr(Du)}")
        for k in range(18 - NPRE, 18):
            A(f"s_waitcnt lgkmcnt({17-k})")
            A(f"v_mfma_f32_16x16x32_bf16 {vr(Dg)}, {vr(X+4*k)}, {ar(4*k)}, {vr(Dg)}")
            A(f"v_mfma_f32_16x16x32_bf16 {vr(Du)}, {vr(X+4*k)}, {ar(72+4*k)}, {vr(Du)}")
        a, b = vT, vT + 1
        self.xstamp("gu")
        A(f"v_cndmask_b32 v{a}, v{Dg}, v{Dg+1}, s[{sM0}:{sM1}]\nv_mul_f32 v{vT+2}, s{sNLOG2E}, v{a}\nv_exp_f32 v{vT+2}, v{vT+2}\nv_cndmask_b32 v{b}, v{Du}, v{Du+1}, s[{sM0}:{sM1}]")
        A(f"v_add_f32 v{vT+2}, 1.0, v{vT+2}\nv_rcp_f32 v{vT+2}, v{vT+2}\nv_mul_f32 v{a}, v{a}, v{b}\nv_mul_f32 v{a}, v{a}, v{vT+2}")
        A(f"v_cvt_pk_bf16_f32 v{a}, v{a}, v{a}\nds_write_b16 v{cC}, v{a}")
        A("s_waitcnt lgkmcnt(0)\ns_barrier")
        self.xstamp("actbar")
        A(f"ds_read_b128 {vr(X)}, v{cB}\nds_read_b128 {vr(X+4)}, v{cB} offset:64")
        Dd = X + 8
        A("s_waitcnt lgkmcnt(1)")
        for j in range(4): A(f"v_mfma_f32_16x16x32_bf16 {vr(Dd+4*j)}, {vr(X)}, {ar(144+8*j)}, 0")
        A("s_waitcnt lgkmcnt(0)")
        def second(js):
            for j in js: A(f"v_mfma_f32_16x16x32_bf16 {vr(Dd+4*j)}, {vr(X+4)}, {ar(144+8*j+4)}, {vr(Dd+4*j)}")
        def first(js):
            for j in js: A(f"v_mfma_f32_16x16x32_bf16 {vr(Dd+4*j)}, {vr(X)}, {ar(144+8*j)}, 0")
        def put(st, vo):
            d0 = Dd + 16 * st
            if st < 2:
                for j in range(1, 4):
                    for r in range(2): A(f"v_mov_b32_dpp v{d0+r}, v{d0+4*j+r} quad_perm:[0,1,2,3] row_mask:{1<<j:#x} bank_mask:0xf")
            self.tagw([d0], f"s{sFF}")
            A(f"buffer_store_dwordx2 {vr(d0,2)}, v{vo}, {sr(RWS)}, s{RWA+st} offen {ST}")
        second(range(4)); first(range(4, 9)); second(range(4, 6)); put(0, cD); second(range(6, 9)); put(1, cD); put(2, cE)
        self.stamp(6)
        A(f"s_cmp_lg_u32 s{sWAVE}, 0\ns_cbranch_scc1 L_finish")
        R = X
        self.srd(RWQ, sOUT, 2304)
        A(f"v_cmp_gt_u32 vcc, 32, v{vLANE}\nv_add_u32 v{vT}, 4096, v{vVOFF}\nv_mov_b32 v{vT+2}, {OOB:#x}\nv_cndmask_b32 v{cE}, v{vT+2}, v{vT}, vcc\nv_cndmask_b32 v{cG}, 0, -1, vcc")
        A(f"s_mul_i32 s{sA}, s{sI0}, 4608\ns_add_u32 s{sA}, s{sA}, {WS_RP}")
        A(f"v_and_b32 v{vT}, 1, v{vG}\nv_mul_u32_u24 v{vT}, 576, v{vT}\nv_lshrrev_b32 v{vT+1}, 1, v{vG}\nv_add_u32 v{vT}, v{vT}, v{vT+1}\nv_and_b32 v{vT+1}, 3, v{vLANE}\nv_lshl_add_u32 v{vT}, v{vT+1}, 1, v{vT}")
        A(f"s_lshl_b32 s{sB}, s{sI0}, 3\nv_add_u32 v{vT}, s{sB}, v{vT}\nv_lshlrev_b32 v{cA}, 2, v{vT}\nv_add_u32 v{cA}, {L_HB}, v{cA}\nds_read_b32 v{cB}, v{cA}")
        A(f"v_lshlrev_b32 v{vT}, 1, v{vT}\nv_and_b32 v{vT+1}, 12, v{vLANE}\nv_cmp_eq_u32 vcc, 0, v{vT+1}\nv_cndmask_b32 v{cD}, v{vT+2}, v{vT}, vcc")
        if self.c["hint3"]:
            P = X + 32
            notices(WS_F3, "L_rhint"); self.xstamp("rhint")
        if self.c["ackwait"] is not None: A(f"s_waitcnt vmcnt({self.c['ackwait']})")
        if self.c["backoff"]: A(f"s_sleep {self.c['backoff']}")
        done = self.lab("rd")
        A("L_ragain:")
        for i in range(4): A(f"buffer_load_dwordx4 {vr(R+4*i)}, v{vVOFF}, {sr(RWS)}, s{sA} offen offset:{1024*i} {LD}")
        A(f"buffer_load_dwordx4 {vr(R+16)}, v{cE}, {sr(RWS)}, s{sA} offen {LD}")
        A("s_waitcnt vmcnt(0)")
        self.check([R + 2 * i for i in range(8)], f"s{sFF}", vT, masked=([R + 16, R + 18], cG))
        self.retry("L_ragain", done)
        A.label(done)
        self.stamp(7)
        for h in (0, 2): pk(R + h, R + h, R + 4 + h); pk(R + 8 + h, R + 8 + h, R + 12 + h)
        for h in (0, 2): pk(R + h, R + h, R + 16 + h)
        for h in (0, 2): pk(R + h, R + h, R + 8 + h)
        A(f"v_permlane32_swap_b32 v{R}, v{R+2}\nv_permlane32_swap_b32 v{R+1}, v{R+3}")
        pk(R, R, R + 2)
        A(f"v_permlane16_swap_b32 v{R}, v{R+1}\nv_add_f32 v{R}, v{R}, v{R+1}")
        self.allred("v_add_f32", R, vT, ["row_ror:4", "row_ror:8"])
        A(f"s_waitcnt lgkmcnt(0)\nv_add_f32 v{R}, v{cB}, v{R}\nv_cvt_pk_bf16_f32 v{R}, v{R}, v{R}")
        A(f"buffer_store_short v{R}, v{cD}, {sr(RWQ)}, 0 offen")
        A(f"s_cmp_lg_u32 s{sI0}, 0\ns_cbranch_scc1 L_finish")
        if self.c["dbg"]:
            A("s_memtime s[16:17]\ns_memrealtime s[18:19]\ns_waitcnt lgkmcnt(0)\ns_sub_u32 s16, s16, s98\ns_sub_u32 s18, s18, s96\ns_sub_u32 s90, s90, s96\ns_sub_u32 s92, s92, s96")
            A(f"v_mov_b32 v{R+4}, s16\nv_mov_b32 v{R+5}, s18\nv_mov_b32 v{R+6}, s90\nv_mov_b32 v{R+7}, s92\nv_mov_b32 v{vT+3}, 0\ns_mov_b64 exec, 1\nglobal_store_dwordx4 v{vT+3}, {vr(R+4)}, s[100:101]\ns_mov_b64 exec, -1")
        A(f"v_mov_b32 v{vT+3}, {OOB:#x}\nv_cmp_eq_u32 vcc, 0, v{vLANE}\nv_cndmask_b32 v{vT}, v{vT+3}, v{vLANE}, vcc")
        A(f"s_add_u32 s{sA}, s{sEPO}, 1\nv_mov_b32 v{vT+1}, s{sA}\nbuffer_store_dword v{vT+1}, v{vT}, {sr(RWS)}, 0 offen offset:{WS_EPOCH} sc1")
    def finish(self):
        A = self.A
        A("L_finish:")
        if self.c["tilelog"]:
            A(f"s_lshl_b32 s7, s2, 2\ns_add_u32 s7, s7, s{sWAVE}\ns_lshl_b32 s7, s7, 8\ns_add_u32 s7, s7, {WS_LOG}\nv_lshlrev_b32 v{vT}, 2, v{vLANE}")
            A(f"buffer_store_dword v{vLOG}, v{vT}, {sr(RWS)}, s7 offen")
        if self.c["stamps"]:
            if self.c["blk"]: A(f"s_mov_b32 s{sSPIN}, s27")
            A("s_memrealtime s[16:17]\ns_getreg_b32 s18, hwreg(HW_REG_XCC_ID)\ns_waitcnt lgkmcnt(0)")
            B = vU + 100
            A(f"s_lshl_b32 s7, s2, 2\ns_add_u32 s7, s7, s{sWAVE}\ns_lshl_b32 s7, s7, 7\ns_add_u32 s7, s7, {WS_STAMP}")
            A(f"v_mov_b32 v{B}, 0")
            for i in range(8): A(f"v_writelane_b32 v{B}, s{STAMP_REGS[i]}, {i}")
            A(f"v_writelane_b32 v{B}, s16, 8\nv_writelane_b32 v{B}, s18, 9\nv_writelane_b32 v{B}, s{sROLE}, 10\nv_writelane_b32 v{B}, s{sSPIN}, 11")
            A(f"v_writelane_b32 v{B}, s{sMBI}, 12\nv_writelane_b32 v{B}, s{STAMP_REGS[8]}, 13\nv_writelane_b32 v{B}, s{STAMP_REGS[9]}, 14")
            A(f"v_lshlrev_b32 v{B+1}, 2, v{vLANE}\nv_cmp_gt_u32 vcc, 32, v{vLANE}\nv_mov_b32 v{B+2}, {OOB:#x}\nv_cndmask_b32 v{B+1}, v{B+2}, v{B+1}, vcc")
            A(f"buffer_store_dword v{B}, v{B+1}, {sr(RWS)}, s7 offen")
        A("L_end:\ns_endpgm")

    def build(self):
        A = self.A
        self.prologue()
        A(f"s_cmp_eq_u32 s{sROLE}, {ROLE_FFN}\ns_cbranch_scc1 L_stage_ffn\ns_cmp_eq_u32 s{sROLE}, {ROLE_O}\ns_cbranch_scc1 L_stage_o")
        self.q_issue(wait=self.c["qwait"])
        A("L_staged:")
        self.q_finish()
        self.stream()
        self.publish_partial()
        self.tail_o()
        self.tail_ffn()
        A("s_branch L_finish\nL_tail_end:\nL_stage_o:")
        self.stage_o()
        A("s_branch L_staged\nL_stage_ffn:")
        self.stage_ffn()
        A("s_branch L_staged")
        self.finish()
        body = A.finalize()
        kv = 1 << 28
        bad = check_provenance(A.ins, {0: 2304, 8: kv, 16: kv, 24: 576 * 8192, 32: 4096 * 1152, 40: 2304, 48: 576 * 9216, 56: 576 * 9216, 64: 4608 * 1152, 72: 2304, 80: 256, 88: 1 << 30})
        if bad: raise SystemExit("provenance check failed:\n" + "\n".join(bad[:12]))
        tab = make_table(self.c)
        head = open("cdna_kernels/" + NAME + ".s.ref").read().split("; Override launch")[0]
        out = head + f"; @launch grid=(256,1,1) block=(256,1,1) lds={LDS_BYTES}\n"
        out += f'.amdgcn_target "amdgcn-amd-amdhsa--gfx950"\n.text\n.globl {NAME}_kernel\n.p2align 8\n.type {NAME}_kernel,@function\n{NAME}_kernel:\n'
        out += body
        out += ".p2align 4\n.type L_table,@object\nL_table:\n" + "".join(f".long {a:#x}, {b:#x}\n" for a, b in tab) + ".size L_table, 2048\n"
        out += f""".section .rodata,"a"
.p2align 6
.amdhsa_kernel {NAME}_kernel
  .amdhsa_next_free_vgpr 472
  .amdhsa_next_free_sgpr 102
  .amdhsa_accum_offset 256
  .amdhsa_group_segment_fixed_size 0
  .amdhsa_kernarg_size 96
  .amdhsa_user_sgpr_count 2
  .amdhsa_user_sgpr_kernarg_segment_ptr 1
  .amdhsa_system_sgpr_workgroup_id_x 1
  .amdhsa_float_denorm_mode_32 3
.end_amdhsa_kernel
"""
        return out

def generate(**cfg): return Gen(cfg).build()
if __name__ == "__main__":
    cfg = json.loads(sys.argv[2]) if len(sys.argv) > 2 else {}
    open(sys.argv[1], "w").write(generate(**cfg))
```
